```python
import torch

def _softmax(x, axis=-1):
    return torch.softmax(x, dim=axis)
def _gelu(x):
    return torch.nn.functional.gelu(x, approximate="tanh")
def _silu(x):
    return torch.nn.functional.silu(x)
def _sigmoid(x):
    return torch.sigmoid(x)
def _layernorm(x, axis=-1, eps=1e-5):
    m = x.mean(dim=axis, keepdim=True)
    v = x.var(dim=axis, keepdim=True, unbiased=False)
    return (x - m) / torch.sqrt(v + eps)
def _scatter_add(tgt, idx, src, axis=0):
    return tgt.clone().index_add_(axis, idx, src)
def _segment_sum(src, seg, n):
    out = torch.zeros((n,) + src.shape[1:], dtype=src.dtype)
    return out.index_add_(0, seg, src)
def _pad(x, pw):
    flat = tuple(v for pair in reversed(pw) for v in pair)
    return torch.nn.functional.pad(x, flat)

kernel_name = 'concat_heads__mha_block_cached__gqa_block_cached__near_ridge'

def setup_inputs():

    _w = (lambda a: (lambda t: t.to(torch.bfloat16) if t.is_floating_point() else t)(torch.as_tensor(a)))
    def _A_setup():
        B, Sq, D = 8, 96, 640
        H, Sk, Dh = 32, 96, 128
        return {
            "x": _w((lambda *s: torch.randn(*s, dtype=torch.bfloat16) * 0.8)(B, Sq, D)),
            "k_cache": _w((lambda *s: torch.randn(*s, dtype=torch.bfloat16) * 0.8)(B, H, Sk, Dh)),
            "v_cache": _w((lambda *s: torch.randn(*s, dtype=torch.bfloat16) * 0.05)(B, H, Sk, Dh)),
            "wq": _w((lambda *s: torch.randn(*s, dtype=torch.bfloat16) * 0.8)(D, H * Dh) * (D ** -0.5)),
            "wo": _w((lambda *s: torch.randn(*s, dtype=torch.bfloat16) * 0.05)(H * Dh, D) * ((H * Dh) ** -0.5)),
        }
    _A_in = _A_setup()

    def _B_setup():
        B, Sq, D = 8, 96, 640
        Hq, Hkv, Sk, Dh = 32, 32, 96, 128
        assert Hq % Hkv == 0, (Hq, Hkv)
        return {
            "x": _w((lambda *s: torch.randn(*s, dtype=torch.bfloat16) * 0.8)(B, Sq, D)),
            "k_cache": _w((lambda *s: torch.randn(*s, dtype=torch.bfloat16) * 0.8)(B, Hkv, Sk, Dh)),
            "v_cache": _w((lambda *s: torch.randn(*s, dtype=torch.bfloat16) * 0.05)(B, Hkv, Sk, Dh)),
            "wq": _w((lambda *s: torch.randn(*s, dtype=torch.bfloat16) * 0.8)(D, Hq * Dh) * (D ** -0.5)),
            "wo": _w((lambda *s: torch.randn(*s, dtype=torch.bfloat16) * 0.05)(Hq * Dh, D) * ((Hq * Dh) ** -0.5)),
        }
    _B_in = _B_setup()

    return {
        "A_x": _A_in["x"],
        "A_k_cache": _A_in["k_cache"],
        "A_v_cache": _A_in["v_cache"],
        "A_wq": _A_in["wq"],
        "A_wo": _A_in["wo"],
        "B_x": _B_in["x"],
        "B_k_cache": _B_in["k_cache"],
        "B_v_cache": _B_in["v_cache"],
        "B_wq": _B_in["wq"],
        "B_wo": _B_in["wo"],
    }

def reference(A_x, A_k_cache, A_v_cache, A_wq, A_wo, B_x, B_k_cache, B_v_cache, B_wq, B_wo):
    def _A_ref(x, k_cache, v_cache, wq, wo):
        B, Sq, D = x.shape
        H, Dh = 32, 128
        q = (lambda x, *d: x.permute(*d))((x @ wq).reshape(B, Sq, H, Dh), 0, 2, 1, 3)
        scores = torch.einsum("bhqd,bhkd->bhqk", q, k_cache) * (Dh ** -0.5)
        p = _softmax(scores, axis=-1)
        o = torch.einsum("bhqk,bhkd->bhqd", p, v_cache)
        return (lambda x, *d: x.permute(*d))(o, 0, 2, 1, 3).reshape(B, Sq, H * Dh) @ wo

    def _B_ref(x, k_cache, v_cache, wq, wo):
        B, Sq, D = x.shape
        Hq, Dh = 32, 128
        Hkv = k_cache.shape[1]
        rep = Hq // Hkv
        q = (lambda x, *d: x.permute(*d))((x @ wq).reshape(B, Sq, Hq, Dh), 0, 2, 1, 3)
        k = (lambda x, n, axis: torch.repeat_interleave(x, n, dim=axis))(k_cache, rep, axis=1)
        v = (lambda x, n, axis: torch.repeat_interleave(x, n, dim=axis))(v_cache, rep, axis=1)
        scores = torch.einsum("bhqd,bhkd->bhqk", q, k) * (Dh ** -0.5)
        p = _softmax(scores, axis=-1)
        o = torch.einsum("bhqk,bhkd->bhqd", p, v)
        return (lambda x, *d: x.permute(*d))(o, 0, 2, 1, 3).reshape(B, Sq, Hq * Dh) @ wo

    a = _A_ref(A_x, A_k_cache, A_v_cache, A_wq, A_wo)
    b = _B_ref(B_x, B_k_cache, B_v_cache, B_wq, B_wo)
    return torch.concatenate([a, b], axis=-1)
```

```python
import re

class V:
    cnt = 0
    def __init__(self, n=1, name="", fixed=None):
        self.n = n; self.name = name; self.phys = fixed; self.fixed = fixed is not None
        V.cnt += 1; self.id = V.cnt
    def __getitem__(self, k):
        if isinstance(k, slice):
            a = k.start or 0; b = k.stop if k.stop is not None else self.n
            assert 0 <= a < b <= self.n
            return R(self, a, b - a)
        assert 0 <= k < self.n
        return R(self, k, 1)
    def all(self): return R(self, 0, self.n)

class R:
    def __init__(self, v, off, n): self.v = v; self.off = off; self.n = n
    def regs(self): return range(self.v.phys + self.off, self.v.phys + self.off + self.n)
    def txt(self):
        a = self.v.phys + self.off
        return f"v{a}" if self.n == 1 else f"v[{a}:{a+self.n-1}]"

def asR(x):
    return x.all() if isinstance(x, V) else x

class I:
    def __init__(self, kind, fmt, ops=(), defs=(), uses=(), sdefs=(), suses=(), note=None, **kw):
        self.kind = kind; self.fmt = fmt
        self.ops = [asR(o) for o in ops]
        self.defs = [asR(o) for o in defs]; self.uses = [asR(o) for o in uses]
        self.sdefs = set(sdefs); self.suses = set(suses)
        self.note = note; self.kw = kw
    def text(self):
        t = self.fmt.format(*[o.txt() if isinstance(o, R) else o for o in self.ops])
        if self.note: t += f"    ; {self.note}"
        return t
    def dregs(self):
        s = set()
        for r in self.defs: s.update(r.regs())
        return s
    def uregs(self):
        s = set()
        for r in self.uses: s.update(r.regs())
        return s

def mfma(d, a, b, c=None):
    if c is None:
        return I("mfma", "v_mfma_f32_16x16x32_bf16 {0}, {1}, {2}, {0}", [d, a, b], defs=[d], uses=[a, b, d], ab=[a, b], acc=True)
    assert c == 0
    return I("mfma", "v_mfma_f32_16x16x32_bf16 {0}, {1}, {2}, 0", [d, a, b], defs=[d], uses=[a, b], ab=[a, b], acc=False)
def valu(op, d, *src, kind="valu", suses=(), sdefs=()):
    ops = [d] + list(src)
    fmt = op + " " + ", ".join("{%d}" % i for i in range(len(ops)))
    uses = [s for s in src if isinstance(s, (V, R))]
    su = set(suses) | {s for s in src if isinstance(s, str) and re.match(r"^(s\d+|vcc|m0)$", s)}
    defs = [d] if isinstance(d, (V, R)) else []
    return I(kind, fmt, [asR(o) if isinstance(o, (V, R)) else str(o) for o in ops], defs=defs, uses=uses, suses=su, sdefs=sdefs)
def trans(op, d, s): return valu(op, d, s, kind="trans")
def fma_neg(d, a, b, c):
    return I("valu", "v_fma_f32 {0}, {1}, {2}, -{3}", [d, a, b if isinstance(b, str) else asR(b), c], defs=[d],
             uses=[a, c] + ([] if isinstance(b, str) else [b]), suses={b} if isinstance(b, str) else ())
def perm(op, a, b): return I("perm", op + " {0}, {1}", [a, b], defs=[a, b], uses=[a, b])
def dsr(op, d, addr, off):
    assert 0 <= off < 65536, off
    return I("dsr", op + " {0}, {1} offset:%d" % off, [d, addr], defs=[d], uses=[addr])
def dsw(op, addr, s, off):
    assert 0 <= off < 65536, off
    return I("dsw", op + " {0}, {1} offset:%d" % off, [addr, s], uses=[addr, s])
def srd_regs(b): return {f"s{b+i}" for i in range(4)}
def vload(op, d, addr, srd, soff, off=0, fl=""):
    assert 0 <= off < 4096
    return I("vload", f"{op} {{0}}, {{1}}, s[{srd}:{srd+3}], {soff} offen offset:{off} {fl}".rstrip(), [d, addr], defs=[d], uses=[addr], suses=srd_regs(srd) | {str(soff)})
def vstore(op, s, addr, srd, soff, off=0, fl=""):
    assert 0 <= off < 4096
    return I("vstore", f"{op} {{0}}, {{1}}, s[{srd}:{srd+3}], {soff} offen offset:{off} {fl}".rstrip(), [s, addr], uses=[s, addr], suses=srd_regs(srd) | {str(soff)}, data=asR(s))
def dma(addr, srd, soff, fl="", tag=None, off=0):
    return I("dma", f"buffer_load_dwordx4 {{0}}, s[{srd}:{srd+3}], {soff} offen offset:{off} {fl} lds".replace("  ", " "), [addr], uses=[addr], suses=srd_regs(srd) | {str(soff), "m0"}, tag=tag)
def salu(txt, sdefs=(), suses=()):
    if not sdefs:
        m = re.match(r"^\S+\s+(s\d+|m0|vcc|exec)\b", txt)
        sdefs = [m.group(1)] if m and not txt.startswith("s_cmp") else []
    return I("salu", txt.replace("{", "{{").replace("}", "}}"), sdefs=sdefs, suses=suses)
def bar(name): return I("bar", "s_barrier", note=name, name=name)
def waitl(n): return I("wait", f"s_waitcnt lgkmcnt({n})", lg=n)
def waitv(n): return I("wait", f"s_waitcnt vmcnt({min(n,63)})", vm=min(n, 63))
def nop(n): return I("nop", f"s_nop {n}", states=n + 1)
def raw(txt, defs=(), uses=(), ops=(), flush=False):
    return I("raw", txt, ops, defs=defs, uses=uses, flush=flush)

def allocate(code, lo, hi):
    first = {}; last = {}
    for i, ins in enumerate(code):
        for r in ins.defs + ins.uses:
            v = r.v
            if v.fixed: continue
            first.setdefault(v, i); last[v] = i
    free = [True] * 512
    for k in range(512):
        if k < lo or k >= hi: free[k] = False
    ends = {}
    for v in last: ends.setdefault(last[v], []).append(v)
    starts = {}
    for v in first: starts.setdefault(first[v], []).append(v)
    peak = 0; maxreg = 0
    freed_at = [-10**9] * 512
    for i, ins in enumerate(code):
        for v in starts.get(i, []):
            al = 1 if v.n == 1 else (2 if v.n == 2 else 4)
            best = None
            rng = range(lo + (-lo) % al, hi - v.n + 1, al)
            if v.n == 1: rng = reversed(range(lo, hi))
            for a in rng:
                if all(free[a + k] for k in range(v.n)):
                    age = max(freed_at[a + k] for k in range(v.n))
                    if i - age >= 12: best = a; break
                    if best is None or age < bage: best = a; bage = age
            if best is None:
                raise RuntimeError(f"out of registers at instr {i}: {ins.fmt} for {v.name} n={v.n}")
            v.phys = best
            for k in range(v.n): free[best + k] = False
            maxreg = max(maxreg, best + v.n)
        used = sum(1 for k in range(lo, hi) if not free[k]); peak = max(peak, used)
        for v in ends.get(i, []):
            for k in range(v.n): free[v.phys + k] = True; freed_at[v.phys + k] = i
    return peak

def insert_waits(code):
    out = []; lg = []; vm = []
    for ins in code:
        touched = ins.dregs() | ins.uregs()
        if ins.kind == "wait":
            if "lg" in ins.kw:
                n = ins.kw["lg"]; lg = lg[len(lg) - n:] if n < len(lg) else lg
                if n == 0: lg = []
            if "vm" in ins.kw:
                n = ins.kw["vm"]; vm = vm[len(vm) - n:] if n < len(vm) else vm
                if n == 0: vm = []
            out.append(ins); continue
        for q, mk, mx in ((lg, waitl, 15), (vm, waitv, 63)):
            idx = max((k for k, s in enumerate(q) if s & touched), default=-1)
            if idx >= 0:
                n = min(len(q) - 1 - idx, mx)
                w = mk(n); w.note = "auto"; out.append(w)
                del q[:len(q) - n]
        if ins.kind == "dsr": lg.append(ins.dregs())
        elif ins.kind == "dsw": lg.append(set())
        elif ins.kind == "vload": vm.append(ins.dregs())
        elif ins.kind in ("vstore", "dma"): vm.append(set())
        out.append(ins)
    return out

VALUK = ("valu", "trans", "perm")
def need_states(p, c):
    n = 0
    pd = p.dregs(); cu = c.uregs(); cd = c.dregs()
    if p.kind in VALUK:
        if c.kind == "mfma" and pd & cu: n = max(n, 2)
        if c.kind == "perm" and pd & cu: n = max(n, 2)
        if p.kind == "trans" and c.kind in ("valu", "perm") and pd & cu: n = max(n, 1)
        if c.kind in VALUK + ("raw",) and ("readfirstlane" in c.fmt or "readlane" in c.fmt) and pd & cu: n = max(n, 1)
        if "_dpp" in c.fmt and pd & cu: n = max(n, 2)
        if p.sdefs:
            if c.kind in ("vload", "vstore", "dma") and p.sdefs & c.suses: n = max(n, 5)
            if c.kind in VALUK and p.sdefs & c.suses: n = max(n, 2)
            if c.kind == "salu": n = max(n, 1) if p.sdefs & c.suses else n
    if p.kind == "mfma":
        if c.kind == "mfma":
            ab = set()
            for r in c.kw["ab"]: ab.update(asR(r).regs())
            if pd & ab: n = max(n, 8)
            if pd & cd:
                if not (c.kw["acc"] and pd == cd): n = max(n, 8)
        elif pd & (cu | cd): n = max(n, 8)
    if p.kind == "vstore" and p.kw["data"].n >= 3:
        if set(p.kw["data"].regs()) & cd: n = max(n, 2)
    if p.kind == "salu" and "m0" in p.sdefs and c.kind == "dma": n = max(n, 1)
    return n

def insert_nops(code):
    out = []
    for ins in code:
        need = 0; dist = 0
        for p in reversed(out):
            if dist >= 12: break
            k = need_states(p, ins)
            if k > dist: need = max(need, k - dist)
            if p.kind == "raw" and p.fmt.rstrip().endswith(":"): continue
            dist += p.kw.get("states", 1)
        if need:
            w = nop(need - 1); w.note = "hazard"; out.append(w)
        out.append(ins)
    return out

def finish(code, lo, hi):
    peak = allocate(code, lo, hi)
    code = insert_waits(code)
    code = insert_nops(code)
    return code, peak

def interleave(spine, fillers, start=0, end=None, per=2):
    end = len(spine) if end is None else end
    slots = [[] for _ in spine]
    n = end - start
    for k, f in enumerate(fillers):
        slots[start + min(n - 1, k * n // max(1, len(fillers)))].append(f)
    return slots
def merge(spine, *slotsets):
    out = []
    for i, m in enumerate(spine):
        out.append(m)
        for s in slotsets: out.extend(s[i])
    return out
```

```python
import sys, math
from backend import *

NAME = "concat_heads__mha_block_cached__gqa_block_cached__near_ridge"

class Cfg:
    fl_x = "nt"; fl_wq = "nt"; fl_k = "nt"; fl_v = "nt"; fl_wo = "nt"
    order_mode = "dir"
    quota = 7
    kpos = (6, 9, 12)
    rd_span = 16
    stamps = False
    poll_max = 4000
    st_epoch = ("O0", "G1", "G4", "G7")
    fl_epoch = ("G1", "G3", "G6", "G9")
    po_epoch = ("G2", "G5", "G8", "G11")
    prefetch_code = True
    def __init__(self, **kw):
        for k, v in kw.items():
            assert hasattr(self, k), k
            setattr(self, k, v)

LA, LB, LC = 0, 49152, 98304
WO_SLOT = [LC, LC + 20480, LC + 40960, LB, LB + 20480]
WS_O, WS_P, WS_FO, WS_FP, WS_ST = 0, 16 << 20, 32 << 20, 33 << 20, 40 << 20
S_BR, S_KQ, S_B, S_P, S_NS, S_W = "s3", "s4", "s5", "s6", "s7", "s8"
SRD_X, SRD_WQ, SRD_K, SRD_V, SRD_WO, SRD_OUT, SRD_DBG, SRD_WS = 44, 48, 52, 56, 60, 64, 68, 72
BARS = [f"Q{i}" for i in range(20)] + ["KB", "VB", "VH", "O0"] + [f"G{i}" for i in range(16)]
BI = {n: i for i, n in enumerate(BARS)}

def srd(base, ptr, size):
    return [salu(f"s_mov_b32 s{base}, s{ptr}"), salu(f"s_mov_b32 s{base+1}, s{ptr+1}"),
            salu(f"s_mov_b32 s{base+2}, {size:#x}"), salu(f"s_mov_b32 s{base+3}, 0x20000")]

def stamp(cfg, idx, vst):
    if not cfg.stamps: return []
    return [raw("s_memrealtime s[98:99]"), waitl(0), raw(f"v_writelane_b32 {{0}}, s98, {idx}", ops=[vst], defs=[vst], uses=[vst])]

def granule(E):
    if E < 4: return 0, E
    return 1 + (E - 4) % 3, (E - 4) // 3

def compute(cfg):
    c = []; a = c.append; ext = c.extend
    v0 = V(1, "tid", fixed=0)
    lane = V(1, "lane"); g = V(1, "g"); j16 = V(1, "j16"); r4 = V(1, "r"); c4 = V(1, "c")
    t0 = V(1); t1 = V(1); t2 = V(1)
    vst = V(1, "stamps")
    a(salu(f"s_lshr_b32 s9, {S_W}, 1"))
    a(salu(f"s_and_b32 s10, {S_W}, 1"))
    a(valu("v_and_b32", lane, 63, v0))
    a(valu("v_lshrrev_b32", g, 4, lane)); a(valu("v_and_b32", j16, 15, lane))
    a(valu("v_lshrrev_b32", r4, 2, j16)); a(valu("v_and_b32", c4, 3, lane))
    zero = V(1, "zero"); fa = V(1, "fa")
    a(waitl(0))
    if cfg.stamps: a(valu("v_mov_b32", vst, 0)); a(nop(1)); a(raw("v_writelane_b32 {0}, s96, 0", ops=[vst], defs=[vst], uses=[vst]))
    ext(srd(SRD_WS, 40, 0x10000000)); ext(srd(SRD_DBG, 38, 256)); ext(srd(SRD_OUT, 36, 768 * 1280 * 2))
    a(salu(f"s_lshl_b32 s11, {S_BR}, 3")); a(salu(f"s_add_u32 s11, s11, {S_B}"))
    a(salu(f"s_lshl_b32 s12, s11, 2")); a(salu(f"s_add_u32 s12, s12, {S_P}"))
    a(salu(f"s_lshl_b32 s13, s12, 8")); a(salu(f"s_lshl_b32 s14, {S_W}, 4")); a(salu("s_add_u32 s13, s13, s14"))
    a(salu(f"s_add_u32 s76, s13, {WS_FP:#x}"))
    a(salu(f"s_lshl_b32 s14, {S_KQ}, 2")); a(salu("s_add_u32 s77, s76, s14"))
    a(salu(f"s_lshl_b32 s13, {S_BR}, 2")); a(salu(f"s_add_u32 s13, s13, {S_KQ}")); a(salu("s_lshl_b32 s13, s13, 3")); a(salu(f"s_add_u32 s13, s13, {S_B}"))
    a(salu("s_lshl_b32 s13, s13, 8")); a(salu(f"s_lshl_b32 s14, {S_P}, 2")); a(salu("s_add_u32 s13, s13, s14"))
    a(salu(f"s_add_u32 s78, s13, {WS_FO:#x}"))
    a(salu(f"s_lshl_b32 s13, s11, 4")); a(salu(f"s_lshl_b32 s14, {S_KQ}, 2")); a(salu("s_add_u32 s13, s13, s14")); a(salu(f"s_add_u32 s79, s13, {S_P}"))
    a(valu("v_mov_b32", zero, 0))
    a(salu("s_mov_b64 exec, 1", sdefs=["exec"]))
    a(vstore("buffer_store_dword", zero, zero, SRD_WS, "s77", fl="sc0 sc1"))
    a(vstore("buffer_store_dword", zero, zero, SRD_WS, "s78", fl="sc0 sc1"))
    a(salu("s_mov_b64 exec, -1", sdefs=["exec"]))
    if cfg.prefetch_code:
        pf = V(1, "pf"); pa = V(1, "pa")
        a(salu("s_lshr_b32 s13, s2, 3")); a(salu("s_lshl_b32 s13, s13, 2")); a(salu(f"s_add_u32 s13, s13, {S_W}")); a(salu("s_lshl_b32 s13, s13, 9"))
        a(valu("v_lshlrev_b32", pa, 7, c4)); a(valu("v_add_u32", pa, "s13", pa))
        a(valu("v_min_u32", pa, "L_code_end-L_code_base-4", pa))
        a(salu("s_mov_b64 exec, 15", sdefs=["exec"]))
        a(I("vload", "global_load_dword {0}, {1}, s[42:43]", [pf, pa], defs=[pf], uses=[pa]))
        a(salu("s_mov_b64 exec, -1", sdefs=["exec"]))
    AW = [V(1, f"aw{t}") for t in range(8)]; AX = [V(1, f"ax{h}") for h in range(2)]
    AK = [V(1, f"ak{t}") for t in range(8)]; AV = [V(1, f"av{t}") for t in range(4)]
    AO = [V(1, f"ao{t}") for t in range(4)]; AOR = V(1, "aor"); AOW = V(1, "aow")
    a(valu("v_and_b32", t0, 1, g)); a(valu("v_lshl_or_b32", t0, t0, 2, r4))
    a(valu("v_lshl_add_u32", t1, g, 3, r4)); a(valu("v_lshlrev_b32", t1, 9, t1))
    a(valu("v_lshl_add_u32", t1, c4, 3, t1)); a(valu("v_lshl_add_u32", t1, t0, 5, t1))
    a(salu(f"s_lshl_b32 s13, s9, 8")); a(salu(f"s_add_u32 s13, s13, {LC}"))
    a(valu("v_add_u32", AW[0], "s13", t1))
    for t in range(1, 8): a(valu("v_xor_b32", AW[t], t << 5, AW[0]))
    a(valu("v_lshrrev_b32", t0, 1, j16)); a(valu("v_xor_b32", t0, t0, g)); a(valu("v_lshlrev_b32", t0, 4, t0))
    a(valu("v_lshl_add_u32", t0, j16, 7, t0))
    a(salu(f"s_mul_i32 s13, s10, {48*128}")); a(salu(f"s_add_u32 s13, s13, {LB}"))
    a(valu("v_add_u32", AX[0], "s13", t0)); a(valu("v_xor_b32", AX[1], 64, AX[0]))
    a(valu("v_lshrrev_b32", t0, 1, g)); a(valu("v_xor_b32", t0, t0, j16)); a(valu("v_lshlrev_b32", t0, 4, t0))
    a(valu("v_lshl_add_u32", t0, j16, 8, t0)); a(valu("v_and_b32", t1, 1, g)); a(valu("v_lshl_add_u32", t0, t1, 3, t0))
    a(salu(f"s_mul_i32 s13, s9, {96*256}")); a(salu(f"s_add_u32 s13, s13, {LA}"))
    a(valu("v_add_u32", AK[0], "s13", t0))
    for t in range(1, 8): a(valu("v_xor_b32", AK[t], t << 5, AK[0]))
    a(valu("v_lshl_add_u32", t2, g, 2, r4))
    a(valu("v_bfe_u32", t0, t2, 1, 2)); a(valu("v_lshlrev_b32", t0, 5, t0))
    a(valu("v_lshl_add_u32", t0, t2, 7, t0)); a(valu("v_lshl_add_u32", t0, c4, 3, t0))
    a(salu(f"s_mul_i32 s13, s9, 12288")); a(salu(f"s_add_u32 s13, s13, {LB}"))
    a(valu("v_add_u32", AV[0], "s13", t0))
    for t in range(1, 4): a(valu("v_xor_b32", AV[t], t << 5, AV[0]))
    a(valu("v_mul_u32_u24", t0, 320, t2)); a(valu("v_lshl_add_u32", t0, c4, 3, t0))
    a(salu("s_mul_i32 s13, s9, 5"))
    for par in range(2):
        a(valu("v_xor_b32", t2, "s13", t1)); a(valu("v_lshl_add_u32", t2, t2, 5, t0))
        a(valu("v_add_u32", AO[par], LC, t2)); a(valu("v_add_u32", AO[2 + par], LB, t2))
        a(salu("s_add_u32 s13, s13, 1"))
    a(salu("s_mul_i32 s13, s10, 3072")); a(valu("v_lshlrev_b32", t0, 4, lane)); a(valu("v_add_u32", AOR, "s13", t0))
    a(salu("s_mul_i32 s13, s9, 6144")); a(valu("v_add_u32", AOW, "s13", AOR))
    a(salu(f"s_mov_b32 s80, {f2u(128 ** -0.5 * math.log2(math.e)):#x}"))
    ones = V(4, "ones")

    def q_reads(t):
        A = [V(4, f"qa{t}_{i}") for i in range(8)]; B = [V(4, f"qb{t}_{j}") for j in range(3)]
        u = t // 2; rd = []
        xo = ((u + 2) & 3) * 12288; wo_ = (t & 3) * 16384
        for j in range(3): rd.append(dsr("ds_read_b128", B[j], AX[t & 1], xo + j * 2048))
        for i in range(8):
            for h in range(2): rd.append(dsr("ds_read_b64_tr_b16", A[i][2*h:2*h+2], AW[i], wo_ + h * 2048))
        return A, B, rd
    QA = [[V(4, f"q{i}_{j}") for j in range(3)] for i in range(8)]
    snake = lambda ni: [(i, (j if i % 2 == 0 else 2 - j)) for i in range(ni) for j in range(3)]
    def k_reads(s, kts):
        fr = {}; rd = []
        for kt in kts:
            f = V(4, f"k{s}_{kt}"); fr[kt] = f
            for u in range(2): rd.append(dsr("ds_read_b64", f[2*u:2*u+2], AK[2 * s + u], kt * 4096))
        return fr, rd
    def q_cvt(s):
        o = []
        for j in range(3):
            T0, T1 = QA[2*s][j], QA[2*s+1][j]
            o += [valu("v_cvt_pk_bf16_f32", T0[0], T0[0], T0[1]), valu("v_cvt_pk_bf16_f32", T0[1], T0[2], T0[3]),
                  valu("v_cvt_pk_bf16_f32", T0[2], T1[0], T1[1]), valu("v_cvt_pk_bf16_f32", T0[3], T1[2], T1[3])]
        return o
    ext(stamp(cfg, 1, vst))
    a(bar("Q0"))
    ext(stamp(cfg, 2, vst))
    A, B, rd = q_reads(0); ext(rd)
    KF = {}
    for t in range(20):
        a(waitl(0))
        a(bar(f"Q{t+1}" if t < 19 else "KB"))
        if cfg.stamps and t in (4, 9, 14, 19): ext(stamp(cfg, 3 + t // 5, vst))
        sp = [mfma(QA[i][j], A[i], B[j], 0 if t == 0 else None) for i, j in snake(8)]
        if t < 19:
            A, B, rd = q_reads(t + 1)
            extra = []
            if t == 2:
                extra = [waitv(0)]
            if t == 3:
                one = V(1, "one")
                extra = [valu("v_mov_b32", one, 1), salu(f"s_cmp_eq_u32 {S_W}, 0"), salu("s_cselect_b64 exec, 1, 0", sdefs=["exec"]),
                         raw("s_cbranch_execz L_nopub"),
                         vstore("buffer_store_byte", one, zero, SRD_DBG, "s79", fl="sc0 sc1"), raw("L_nopub:"), salu("s_mov_b64 exec, -1", sdefs=["exec"]), nop(3)]
            ext(merge(sp, interleave(sp, rd, 0, cfg.rd_span)))
            ext(extra)
        else:
            KF[0], rd = k_reads(0, range(6))
            s1 = interleave(sp, rd, 0, 12)
            s2 = interleave(sp, q_cvt(0), 10, 16); s3 = interleave(sp, q_cvt(1), 16, 24)
            ext(merge(sp, s1, s2, s3))
    SA = [[V(4, f"s{kt}_{j}") for j in range(3)] for kt in range(6)]
    M = [V(1, f"m{j}") for j in range(3)]
    def max_ops(kt):
        o = []
        for j in range(3):
            T = SA[kt][j]
            if kt == 0: o += [valu("v_max3_f32", M[j], T[0], T[1], T[2]), valu("v_max_f32", M[j], M[j], T[3])]
            else: o += [valu("v_max3_f32", M[j], M[j], T[0], T[1]), valu("v_max3_f32", M[j], M[j], T[2], T[3])]
        return [o[0], o[2], o[4], o[1], o[3], o[5]]
    for s in range(4):
        sp = [mfma(SA[kt][j], KF[s][kt], QA[2*s][j], 0 if s == 0 else None) for kt, j in snake(6)]
        sl = []
        if s < 3:
            KF[s + 1], rd = k_reads(s + 1, range(6)); sl.append(interleave(sp, rd, 0, 12))
        if s == 0: sl.append(interleave(sp, q_cvt(2), 0, 9)); sl.append(interleave(sp, q_cvt(3), 9, 18))
        if s == 1: sl.append(interleave(sp, [valu("v_mov_b32", ones[k], "0x3f803f80") for k in range(4)], 12, 16))
        if s == 3:
            for kt in range(4): sl.append(interleave(sp, max_ops(kt), 3 * kt + 6, 3 * kt + 9))
        a(waitl(0))
        ext(merge(sp, *sl))
    ext(stamp(cfg, 7, vst))
    ext(max_ops(4)); ext(max_ops(5))
    T = [V(1, f"mt{j}") for j in range(3)]
    for op in ("v_permlane32_swap_b32", "v_permlane16_swap_b32"):
        for j in range(3): a(valu("v_mov_b32", T[j], M[j]))
        for j in range(3): a(perm(op, M[j], T[j]))
        for j in range(3): a(valu("v_max_f32", M[j], M[j], T[j]))
    for j in range(3): a(valu("v_mul_f32", M[j], "s80", M[j]))
    def v_reads(s):
        fr = {}; rd = []
        for dt in (2*s, 2*s+1):
            for ks in range(3):
                f = V(4, f"v{dt}_{ks}"); fr[dt, ks] = f
                for u in range(2):
                    rd.append(dsr("ds_read_b64_tr_b16", f[2*u:2*u+2], AV[dt & 3], (dt >> 2) * 24576 + (32 * ks + 16 * u) * 128))
        return fr, rd
    sm = []
    for ks in range(3):
        for j in range(3):
            T0, T1 = SA[2*ks][j], SA[2*ks+1][j]
            regs = [T0[k] for k in range(4)] + [T1[k] for k in range(4)]
            for x in regs: sm.append(fma_neg(x, x, "s80", M[j]))
            for x in regs: sm.append(trans("v_exp_f32", x, x))
            sm += [valu("v_cvt_pk_bf16_f32", T0[0], T0[0], T0[1]), valu("v_cvt_pk_bf16_f32", T0[1], T0[2], T0[3]),
                   valu("v_cvt_pk_bf16_f32", T0[2], T1[0], T1[1]), valu("v_cvt_pk_bf16_f32", T0[3], T1[2], T1[3])]
    P = [[SA[2*ks][j] for j in range(3)] for ks in range(3)]
    SUM = [V(4, f"sum{j}") for j in range(3)]
    VF = {}
    n1 = 20
    for ks in range(3):
        for j in range(3):
            k = ks * 3 + j
            blk = sm[k * n1:(k + 1) * n1]
            if k == 7:
                a(bar("VB")); ext(stamp(cfg, 8, vst))
                VF[0], rd = v_reads(0)
                blk = merge(blk, interleave(blk, rd, 0, 12))
            if k >= 1:
                pk, pj = divmod(k - 1, 3)
                blk = blk[:3] + [mfma(SUM[pj], ones, P[pk][pj], 0 if pk == 0 else None)] + blk[3:]
            ext(blk)
    OA = [[V(4, f"o{dt}_{j}") for j in range(3)] for dt in range(8)]
    RI = [V(1, f"ri{j}") for j in range(3)]
    def norm(s):
        o = []
        for j in range(3):
            T0, T1 = OA[2*s][j], OA[2*s+1][j]
            for k in range(4): o.append(valu("v_mul_f32", T0[k], T0[k], RI[j]))
            o += [valu("v_cvt_pk_bf16_f32", T0[0], T0[0], T0[1]), valu("v_cvt_pk_bf16_f32", T0[1], T0[2], T0[3])]
        for j in range(3):
            T0, T1 = OA[2*s][j], OA[2*s+1][j]
            for k in range(4): o.append(valu("v_mul_f32", T1[k], T1[k], RI[j]))
            o += [valu("v_cvt_pk_bf16_f32", T0[2], T1[0], T1[1]), valu("v_cvt_pk_bf16_f32", T0[3], T1[2], T1[3])]
            o.append(dsw("ds_write_b128", AOW, T0, LA + s * 12288 + j * 1024))
        return o
    def o_reads(m):
        E, hh = divmod(m, 2)
        A = [V(4, f"wa{m}_{i}") for i in range(5)]; B = [V(4, f"wb{m}_{j}") for j in range(3)]
        rd = []
        for j in range(3): rd.append(dsr("ds_read_b128", B[j], AOR, LA + (E & 3) * 12288 + hh * 6144 + j * 1024))
        sl = WO_SLOT[E % 5]; reg = 0 if sl >= LC else 2; base = sl - (LC if sl >= LC else LB)
        for i in range(5):
            for u in range(2):
                rd.append(dsr("ds_read_b64_tr_b16", A[i][2*u:2*u+2], AO[reg + (i & 1)], base + hh * 10240 + u * 5120 + (i & ~1) * 32))
        return A, B, rd
    for s in range(4):
        sp = []
        for dt in (2*s, 2*s+1):
            for ks in range(3):
                for j in (range(3) if ks % 2 == 0 else reversed(range(3))):
                    sp.append(mfma(OA[dt][j], VF[s][dt, ks], P[ks][j], 0 if ks == 0 else None))
        sl = []
        a(waitl(0))
        if s == 0:
            sp = sp[:2] + [mfma(SUM[2], ones, P[2][2])] + sp[2:]
            sl.append(interleave(sp, [trans("v_rcp_f32", RI[j], SUM[j][0]) for j in range(3)], 12, 18))
        if s == 1: a(bar("VH"))
        if s == 2: a(bar("O0")); ext(stamp(cfg, 9, vst))
        if s == 3: a(bar("G0"))
        if s < 3:
            VF[s + 1], rd = v_reads(s + 1); sl.append(interleave(sp, rd, 0, 12))
        else:
            A, B, rd = o_reads(0); sl.append(interleave(sp, rd, 0, 13))
        if s >= 1: sl.append(interleave(sp, norm(s - 1), 0, 16))
        ext(merge(sp, *sl))
    PA = [[V(4, f"p{i}_{j}") for j in range(3)] for i in range(5)]
    n3 = norm(3)
    for m in range(32):
        a(waitl(0))
        if m % 2 == 1 and m < 31:
            a(bar(f"G{(m+1)//2}"))
            if cfg.stamps and (m + 1) // 2 in (1, 4, 5, 8, 12): ext(stamp(cfg, {1: 10, 4: 11, 5: 12, 8: 13, 12: 14}[(m + 1) // 2], vst))
        sp = [mfma(PA[i][j], A[i], B[j], 0 if m == 0 else None) for i, j in snake(5)]
        sl = []
        if m < 31:
            A, B, rd = o_reads(m + 1); sl.append(interleave(sp, rd, 0, 10))
        if m < 3: sl.append(interleave(sp, n3[m * 13:(m + 1) * 13], 2 if m == 0 else 0, 15 if m < 2 else 12))
        ext(merge(sp, *sl))
    ext(stamp(cfg, 15, vst))
    tiles = [PA[t // 3][t % 3] for t in range(15)]
    la16 = V(1, "la16"); oaddr = V(1, "oaddr"); lane2 = V(1); tt = V(1); one2 = V(1); z2 = V(1)
    a(valu("v_and_b32", lane2, 63, v0)); a(valu("v_lshlrev_b32", la16, 4, lane2))
    a(valu("v_and_b32", tt, 15, lane2)); a(valu("v_mul_u32_u24", oaddr, 2560, tt))
    a(valu("v_lshrrev_b32", tt, 4, lane2)); a(valu("v_lshl_add_u32", oaddr, tt, 3, oaddr))
    a(salu(f"s_mul_i32 s13, {S_B}, {96*2560}")); a(salu(f"s_mul_i32 s14, s10, {48*2560}")); a(salu("s_add_u32 s13, s13, s14"))
    a(salu(f"s_mul_i32 s14, {S_BR}, 1280")); a(salu("s_add_u32 s13, s13, s14"))
    a(salu(f"s_mul_i32 s14, {S_NS}, 320")); a(salu("s_add_u32 s13, s13, s14"))
    a(salu(f"s_mul_i32 s14, s9, 160")); a(salu("s_add_u32 s13, s13, s14"))
    a(valu("v_add_u32", oaddr, "s13", oaddr))
    a(salu(f"s_lshl_b32 s81, s12, 17")); a(salu(f"s_lshl_b32 s14, {S_W}, 11")); a(salu("s_add_u32 s81, s81, s14")); a(salu(f"s_add_u32 s81, s81, {WS_P:#x}"))
    a(valu("v_mov_b32", one2, 1)); a(valu("v_mov_b32", z2, 0))
    for q in range(1, 4):
        a(salu(f"s_cmp_eq_u32 {S_KQ}, {q}")); a(raw(f"s_cbranch_scc1 L_epi{q}"))
    live = tiles + [la16, oaddr, one2, z2] + ([vst] if cfg.stamps else [])
    RX = [[V(4, f"rx{k}_{h}") for h in range(2)] for k in range(3)]; FL = V(4, "fl"); U = V(2, "u")
    for q in range(4):
        a(raw(f"L_epi{q}:")); a(nop(7))
        for d in [(q + k) & 3 for k in (1, 2, 3)]:
            tl = tiles[4 * d:4 * d + 4]
            a(salu(f"s_add_u32 s13, s81, {d * 32768 + q * 8192}"))
            for h in range(2):
                T0 = tl[2 * h]
                a(valu("v_cvt_pk_bf16_f32", T0[0], T0[0], T0[1])); a(valu("v_cvt_pk_bf16_f32", T0[1], T0[2], T0[3]))
                if 2 * h + 1 < len(tl):
                    T1 = tl[2 * h + 1]
                    a(valu("v_cvt_pk_bf16_f32", T0[2], T1[0], T1[1])); a(valu("v_cvt_pk_bf16_f32", T0[3], T1[2], T1[3]))
                a(vstore("buffer_store_dwordx4", T0, la16, SRD_WS, "s13", h * 1024, "sc1"))
        a(waitv(0))
        ext(stamp(cfg, 16, vst))
        a(salu("s_mov_b64 exec, 1", sdefs=["exec"]))
        a(vstore("buffer_store_dword", one2, z2, SRD_WS, "s77", fl="sc0 sc1"))
        a(salu("s_mov_b32 s14, 0"))
        a(raw(f"L_pp{q}:"))
        a(vload("buffer_load_dwordx4", FL, z2, SRD_WS, "s76", fl="sc1")); a(waitv(0))
        o = [k for k in range(4) if k != q]
        a(valu("v_and_b32", FL[o[0]], FL[o[0]], FL[o[1]])); a(valu("v_and_b32", FL[o[0]], FL[o[0]], FL[o[2]]))
        a(I("valu", "v_readfirstlane_b32 s13, {0}", [FL[o[0]]], uses=[FL[o[0]]], sdefs=["s13"]))
        a(salu("s_add_u32 s14, s14, 1")); a(salu("s_cmp_eq_u32 s13, 1", suses=["s13"])); a(raw(f"s_cbranch_scc1 L_pg{q}"))
        a(salu(f"s_cmp_lt_u32 s14, {cfg.poll_max}")); a(raw(f"s_cbranch_scc1 L_pp{q}"))
        a(raw(f"L_pg{q}:"))
        a(salu("s_mov_b64 exec, -1", sdefs=["exec"]))
        ext(stamp(cfg, 17, vst))
        for k, sq in enumerate(o):
            a(salu(f"s_add_u32 s13, s81, {q * 32768 + sq * 8192}"))
            for h in range(2): a(vload("buffer_load_dwordx4", RX[k][h], la16, SRD_WS, "s13", h * 1024, "sc1"))
        own = tiles[4 * q:4 * q + 4]
        for k in range(3):
            for n_, Tn in enumerate(own):
                for e in range(2):
                    src = RX[k][n_ // 2][(n_ % 2) * 2 + e]
                    a(valu("v_lshlrev_b32", U[0], 16, src)); a(valu("v_and_b32", U[1], "0xffff0000", src))
                    a(valu("v_add_f32", Tn[2 * e], Tn[2 * e], U[0])); a(valu("v_add_f32", Tn[2 * e + 1], Tn[2 * e + 1], U[1]))
        for n_, Tn in enumerate(own):
            i, j = divmod(4 * q + n_, 3)
            a(valu("v_cvt_pk_bf16_f32", Tn[0], Tn[0], Tn[1])); a(valu("v_cvt_pk_bf16_f32", Tn[1], Tn[2], Tn[3]))
            a(salu(f"s_mov_b32 s13, {j * 16 * 2560}"))
            a(vstore("buffer_store_dwordx2", Tn[0:2], oaddr, SRD_OUT, "s13", i * 32))
        if cfg.stamps:
            a(waitv(0)); ext(stamp(cfg, 18, vst)); ext(stamp_out(vst, v0))
        a(raw("s_endpgm"))
    a(raw("; keep-alive", uses=live + [x for k in RX for x in k] + [FL, U]))
    if cfg.prefetch_code: c.insert(next(i for i, x in enumerate(c) if x.kind == "bar" and x.kw["name"] == "Q3"), raw("; pf", uses=[pf]))
    return c

def stamp_out(vst, v0):
    t = V(1)
    return [salu("s_lshl_b32 s13, s2, 11"), salu(f"s_add_u32 s13, s13, {WS_ST:#x}"), valu("v_lshlrev_b32", t, 2, v0),
            vstore("buffer_store_dword", vst, t, SRD_WS, "s13"), waitv(0)]

def f2u(x):
    import struct
    return struct.unpack("<I", struct.pack("<f", x))[0]

class Unit:
    def __init__(self, name, lds, size, need, free, ins, earliest=None):
        self.name = name; self.lds = lds; self.size = size; self.need = BI[need]
        self.free = BI[free] if free else len(BARS); self.ins = ins
        self.earliest = BI[earliest] if earliest else -1

def order_tables(cfg):
    if cfg.order_mode == "same": return [list(range(10))] * 4
    if cfg.order_mode == "dir": return [list(range(10)), list(range(9, -1, -1))] * 2
    if cfg.order_mode == "rot": return [[(u + o) % 10 for u in range(10)] for o in (0, 5, 2, 7)]
    if cfg.order_mode.startswith("lead"):
        d = int(cfg.order_mode[4:] or 1); out = []
        for r in range(4):
            key = lambda u: (u - d - 0.5) if (u % 4 == r) else u
            out.append(sorted(range(10), key=key))
        return out
    raise ValueError

def schedule(units, first_bar, last_bar, quota, occupied, pre=None, inflight=None):
    code = []; q = [(u, k) for u in units for k in range(len(u.ins))]; pos = 0
    fl = list(inflight or [])
    for e in range(first_bar - 1, last_bar + 1):
        if e >= first_bar: code.append(bar(BARS[e]))
        for x in (pre or {}).get(e, []):
            code.append(x)
            if x.kind in ("vload", "vstore", "dma"): fl.append(None)
            if x.kind == "wait" and "vm" in x.kw: fl = fl[max(0, len(fl) - x.kw["vm"]):] if x.kw["vm"] else []
        n = 0; qt = quota(e)
        while pos < len(q):
            u, k = q[pos]
            must = any(uu.need <= e + 1 for uu, _ in q[pos:])
            if n >= qt and not must: break
            ok = e >= u.earliest and all(o is u or o.lds + o.size <= u.lds or u.lds + u.size <= o.lds or o.free <= e for o in occupied)
            if not ok:
                assert not must, f"unit {u.name} cannot be placed in epoch {e}"
                break
            if k == 0: occupied.append(u); u.issue = e
            code.extend(u.ins[k]); fl.append(u); pos += 1; n += 1
        if e < last_bar:
            idx = max((k for k, u in enumerate(fl) if u is not None and u.need <= e + 1), default=-1)
            if idx >= 0:
                nn = len(fl) - 1 - idx
                code.append(waitv(nn)); fl = fl[len(fl) - min(nn, 63):] if nn else []
    return code, fl, q[pos:]

def helper(cfg):
    c = []; a = c.append; ext = c.extend
    v0 = V(1, "tid", fixed=0)
    lane = V(1); t0 = V(1); t1 = V(1); t2 = V(1)
    vWQ = V(1, "vwq"); vX = V(1, "vx"); vK = V(1, "vk"); vV = V(1, "vv")
    vst = V(1, "stamps")
    a(salu(f"s_sub_u32 s9, {S_W}, 4"))
    a(valu("v_and_b32", lane, 63, v0))
    tb = [sum(u << (4 * k) for k, u in enumerate(t)) for t in order_tables(cfg)]
    a(salu(f"s_mov_b32 s82, {tb[0] & 0xffffffff:#x}")); a(salu(f"s_mov_b32 s83, {tb[0] >> 32:#x}"))
    for r in range(1, 4):
        if tb[r] != tb[0]:
            a(salu(f"s_cmp_eq_u32 {S_NS}, {r}")); a(salu(f"s_cmov_b32 s82, {tb[r] & 0xffffffff:#x}")); a(salu(f"s_cmov_b32 s83, {tb[r] >> 32:#x}"))
    a(salu("s_lshl_b32 s10, s9, 10"))
    a(salu("s_lshr_b32 s11, s9, 1")); a(salu("s_lshl_b32 s11, s11, 1")); a(salu("s_add_u32 s11, s11, s9"))
    a(salu(f"s_lshl_b32 s12, {S_KQ}, 3")); a(salu(f"s_lshl_b32 s13, {S_P}, 1")); a(salu("s_add_u32 s12, s12, s13"))
    a(valu("v_lshrrev_b32", t0, 4, lane)); a(salu("s_lshl_b32 s13, s9, 2")); a(valu("v_add_u32", t0, "s13", t0))
    a(valu("v_xor_b32", t1, t0, lane)); a(valu("v_and_b32", t1, 7, t1)); a(valu("v_lshlrev_b32", t1, 4, t1))
    a(valu("v_lshrrev_b32", t2, 3, lane)); a(valu("v_mul_u32_u24", vX, 1280, t2)); a(valu("v_add_u32", vX, vX, t1))
    a(salu(f"s_mul_i32 s13, {S_B}, 122880")); a(salu(f"s_mul_i32 s14, s9, {8*1280}")); a(salu("s_add_u32 s13, s13, s14"))
    a(valu("v_add_u32", vX, "s13", vX))
    a(valu("v_lshrrev_b32", t1, 5, lane)); a(salu("s_lshl_b32 s13, s9, 1")); a(valu("v_add_u32", vWQ, "s13", t1))
    a(valu("v_lshlrev_b32", vWQ, 1, vWQ)); a(valu("v_xor_b32", vWQ, vWQ, lane)); a(valu("v_and_b32", vWQ, 31, vWQ)); a(valu("v_lshlrev_b32", vWQ, 4, vWQ))
    a(valu("v_lshl_add_u32", vWQ, t1, 13, vWQ))
    a(salu("s_lshl_b32 s13, s11, 14")); a(salu("s_lshl_b32 s14, s12, 8")); a(salu("s_add_u32 s13, s13, s14"))
    a(valu("v_add_u32", vWQ, "s13", vWQ))
    a(salu("s_lshl_b32 s11, s11, 10"))
    a(waitl(0))
    if cfg.stamps: a(valu("v_mov_b32", vst, 0)); a(nop(1)); a(raw("v_writelane_b32 {0}, s96, 0", ops=[vst], defs=[vst], uses=[vst]))
    ext(srd(SRD_X, 16, 8 * 122880)); ext(srd(SRD_WQ, 22, 640 * 8192))
    late = []; b = late.append
    late += srd(SRD_K, 18, 8 * 786432) + srd(SRD_V, 20, 8 * 786432) + srd(SRD_WO, 24, 4096 * 1280) + srd(SRD_WS, 40, 0x10000000) + srd(SRD_DBG, 38, 256)
    b(salu(f"s_lshl_b32 s13, {S_B}, 5")); b(salu("s_add_u32 s13, s13, s12")); b(salu("s_mul_i32 s13, s13, 24576"))
    b(valu("v_xor_b32", t1, t0, lane)); b(valu("v_and_b32", t1, 15, t1)); b(valu("v_lshlrev_b32", t1, 4, t1))
    b(valu("v_lshl_add_u32", vK, t0, 8, t1)); b(valu("v_add_u32", vK, "s13", vK))
    b(valu("v_lshrrev_b32", t1, 3, lane)); b(valu("v_and_b32", t1, 6, t1)); b(valu("v_xor_b32", t1, t1, lane)); b(valu("v_and_b32", t1, 7, t1)); b(valu("v_lshlrev_b32", t1, 4, t1))
    b(valu("v_lshl_add_u32", vV, t2, 8, t1)); b(salu("s_lshl_b32 s14, s9, 11")); b(salu("s_add_u32 s13, s13, s14")); b(valu("v_add_u32", vV, "s13", vV))

    def D(m0base, m0imm, sbase, simm, vaddr, sr, fl):
        so = salu(f"s_add_u32 s15, {sbase}, {simm:#x}") if sbase else salu(f"s_mov_b32 s15, {simm:#x}")
        m = salu(f"s_add_u32 m0, {m0base}, {m0imm:#x}") if m0base else salu(f"s_mov_b32 m0, {m0imm:#x}")
        return [m, so, dma(vaddr, sr, "s15", fl)]
    units = []
    kch = 0; nk = len(cfg.kpos); kper = 12 // nk
    def kunit(cn):
        return Unit(f"K{cn}", LA + cn * kper * 4096, kper * 4096, "KB", "VB", [D("s10", LA + m * 4096, None, m * 4096, vK, SRD_K, cfg.fl_k) for m in range(cn * kper, (cn + 1) * kper)])
    def vunit(sl):
        half, hh = divmod(sl, 2)
        return Unit(f"V{sl}", LB + sl * 12288, 12288, "VH" if half else "VB", "G0",
                    [D("s10", LB + sl * 12288 + m * 4096, None, hh * 24576 + half * 128 + m * 8192, vV, SRD_V, cfg.fl_v) for m in range(3)])
    nm = lambda t: f"Q{t}" if t < 20 else "KB"
    for t in range(20):
        u = t // 2
        if t % 2 == 0:
            lds = LB + ((u + 2) & 3) * 12288
            ins = [D("s10", lds + m * 4096, "s84", m * 32 * 1280, vX, SRD_X, cfg.fl_x) for m in range(3)]
            src = "s82" if u < 8 else "s83"
            ins[0] = [salu(f"s_bfe_u32 s85, {src}, {(4 << 16) | (4 * (u & 7)):#x}"), salu("s_lshl_b32 s84, s85, 7"), salu("s_lshl_b32 s85, s85, 19")] + ins[0]
            units.append(Unit(f"X{u}", lds, 12288, nm(t), nm(t + 2), ins))
        lds = LC + (t & 3) * 16384
        units.append(Unit(f"W{t}", lds, 16384, nm(t), nm(t + 1),
                          [D("s11", lds + jj * 1024, "s85", ((t & 1) * 32 + 2 * jj) * 8192, vWQ, SRD_WQ, cfg.fl_wq) for jj in (0, 2, 8, 10)]))
        while kch < nk and cfg.kpos[kch] == t: units.append(kunit(kch)); kch += 1
    assert kch == nk
    units += [vunit(s) for s in range(4)]
    occ = []
    def quota(e):
        if e == -1: return 11
        if e >= BI["Q19"]: return 99
        return cfg.quota
    pre = {0: late}
    if cfg.stamps:
        pre[BI["Q10"]] = stamp(cfg, 4, vst); pre[BI["KB"]] = stamp(cfg, 6, vst)
    code, fl, rest = schedule(units, 0, BI["KB"], quota, occ, pre)
    assert not rest, [u.name for u, k in rest]
    ext(code)
    for s in range(4):
        u = Unit(f"Oown{s}", LA + s * 12288, 12288, "G0", f"G{max(s+1, 3 if s == 3 else 0)}", []); occ.append(u)
    a(salu("s_cmp_eq_u32 s9, 2")); a(raw("s_cbranch_scc1 L_storer"))
    a(salu("s_cmp_eq_u32 s9, 3")); a(raw("s_cbranch_scc1 L_poller"))
    fin = lambda: (stamp(cfg, 18, vst) + stamp_out(vst, v0) if cfg.stamps else []) + [raw("s_endpgm")]
    vWO = [V(1, f"vwo{j}") for j in range(5)]
    a(salu(f"s_lshl_b32 s13, {S_KQ}, 3")); a(salu("s_add_u32 s13, s13, s9")); a(salu(f"s_mul_i32 s13, s13, {128*1280}"))
    a(salu(f"s_mul_i32 s14, {S_NS}, 320")); a(salu("s_add_u32 s13, s13, s14"))
    for j in range(5):
        a(valu("v_add_u32", t0, 64 * j, lane)); a(valu("v_mul_u32_u24", t1, 3277, t0)); a(valu("v_lshrrev_b32", t1, 16, t1))
        a(valu("v_mul_u32_u24", t2, 20, t1)); a(valu("v_sub_u32", t0, t0, t2))
        a(valu("v_lshrrev_b32", t2, 1, t1)); a(valu("v_and_b32", t2, 2, t2)); a(valu("v_xor_b32", t0, t0, t2))
        a(valu("v_mul_u32_u24", t1, 1280, t1)); a(valu("v_lshl_add_u32", t0, t0, 4, t1)); a(valu("v_add_u32", vWO[j], "s13", t0))
    for dp in range(4):
        a(salu(f"s_add_u32 s13, {S_P}, {dp}")); a(salu("s_and_b32 s13, s13, 3")); a(salu(f"s_mul_i32 s{86+dp}, s13, {256*1280}"))
    a(salu("s_mul_i32 s10, s9, 10240"))
    wu = []
    for E in range(16):
        dp, s = granule(E); lds = WO_SLOT[E % 5]
        wu.append(Unit(f"WO{E}", lds, 20480, f"G{E}", f"G{E+1}" if E < 15 else None,
                       [D("s10", lds + u * 5120 + j * 1024, f"s{86+dp}", (32 * s + 16 * u) * 1280, vWO[j], SRD_WO, cfg.fl_wo) for u in range(2) for j in range(5)]))
    code, _, rest = schedule(wu, BI["VB"], BI["G15"], lambda e: 30 if e < BI["G0"] else 12, list(occ), None, fl)
    assert not rest
    ext(code); ext(fin())
    a(raw("L_storer:"))
    la16 = V(1, "la16"); z = V(1, "z"); fv = V(1, "fv")
    OF = [[V(4, f"of{s}_{f}") for f in range(12)] for s in range(4)]
    def ogrp():
        return [salu(f"s_lshl_b32 s13, {S_BR}, 2"), salu(f"s_add_u32 s13, s13, {S_KQ}"), salu("s_lshl_b32 s13, s13, 3"), salu(f"s_add_u32 s13, s13, {S_B}")]
    a(valu("v_lshlrev_b32", la16, 4, lane)); a(valu("v_mov_b32", z, 0))
    ext(ogrp())
    a(salu("s_lshl_b32 s14, s13, 2")); a(salu(f"s_add_u32 s14, s14, {S_P}")); a(salu("s_mul_i32 s86, s14, 49152"))
    a(salu("s_lshl_b32 s13, s13, 8")); a(salu(f"s_lshl_b32 s14, {S_P}, 2")); a(salu("s_add_u32 s13, s13, s14")); a(salu(f"s_add_u32 s87, s13, {WS_FO:#x}"))
    rdy = ["O0", "G0", "G1", "G2"]
    assert all(BI[cfg.st_epoch[s]] <= BI[cfg.fl_epoch[s]] <= BI[cfg.po_epoch[s]] for s in range(4))
    pre = {}; seq = []
    for e in range(BI["VB"], BI["G15"] + 1):
        l = []
        for s in range(4):
            if BI[rdy[s]] == e: l += [dsr("ds_read_b128", OF[s][f], la16, LA + s * 12288 + f * 1024) for f in range(12)]
        for s in range(4):
            if BI[cfg.st_epoch[s]] == e:
                assert e >= BI[rdy[s]]
                for f in range(12):
                    if f % 4 == 0: l.append(salu(f"s_add_u32 s15, s86, {WS_O + s * 12288 + f * 1024:#x}"))
                    l.append(vstore("buffer_store_dwordx4", OF[s][f], la16, SRD_WS, "s15", (f % 4) * 1024, "sc1")); seq.append(s)
        for s in range(4):
            if BI[cfg.fl_epoch[s]] == e:
                idx = max(k for k, x in enumerate(seq) if x == s)
                l.append(waitv(len(seq) - 1 - idx))
                l += stamp(cfg, 8 + s, vst)
                l += [valu("v_mov_b32", fv, s + 1), salu("s_mov_b64 exec, 1", sdefs=["exec"]),
                      vstore("buffer_store_dword", fv, z, SRD_WS, "s87", fl="sc0 sc1"), salu("s_mov_b64 exec, -1", sdefs=["exec"])]
                seq.append(-1)
        l.append(waitl(0))
        pre[e] = l
    last = max(BI[x] for x in cfg.fl_epoch)
    code, _, _ = schedule([], BI["VB"], last, lambda e: 0, [], pre, fl)
    ext(code); ext(fin())
    a(raw("L_poller:"))
    la = V(1, "la"); z3 = V(1, "z3"); FL = V(4, "fl")
    a(valu("v_lshlrev_b32", la, 4, lane)); a(valu("v_mov_b32", z3, 0))
    ext(ogrp())
    for dp in range(1, 4):
        a(salu(f"s_add_u32 s14, {S_P}, {dp}")); a(salu("s_and_b32 s14, s14, 3")); a(salu("s_lshl_b32 s15, s13, 2")); a(salu("s_add_u32 s14, s14, s15"))
        a(salu(f"s_mul_i32 s{86+dp}, s14, 49152"))
    a(salu("s_lshl_b32 s13, s13, 8")); a(salu(f"s_add_u32 s86, s13, {WS_FO:#x}"))
    a(salu(f"s_lshl_b32 s13, {S_BR}, 3")); a(salu(f"s_add_u32 s13, s13, {S_B}")); a(salu("s_lshl_b32 s90, s13, 4"))
    def poll(lbl, sr, so, red, cmp):
        return [salu("s_mov_b64 exec, 1", sdefs=["exec"]), salu("s_mov_b32 s14, 0"), raw(f"{lbl}a:"),
                vload("buffer_load_dwordx4", FL, z3, sr, so, fl="sc1"), waitv(0),
                valu(red, FL[0], FL[0], FL[1]), valu(red, FL[2], FL[2], FL[3]), valu(red, FL[0], FL[0], FL[2]),
                I("valu", "v_readfirstlane_b32 s13, {0}", [FL[0]], uses=[FL[0]], sdefs=["s13"]),
                salu("s_add_u32 s14, s14, 1"), salu(cmp, suses=["s13"]), raw(f"s_cbranch_scc1 {lbl}b"),
                salu(f"s_cmp_lt_u32 s14, {cfg.poll_max}"), raw(f"s_cbranch_scc1 {lbl}a"), raw(f"{lbl}b:"), salu("s_mov_b64 exec, -1", sdefs=["exec"])]
    pre = {BI["VH"]: poll("L_hs", SRD_DBG, "s90", "v_and_b32", "s_cmp_eq_u32 s13, 0x01010101")}
    for s in range(4):
        pre.setdefault(BI[cfg.po_epoch[s]], []).extend(poll(f"L_po{s}", SRD_WS, "s86", "v_min_u32", f"s_cmp_ge_u32 s13, {s+1}") + stamp(cfg, 8 + s, vst))
    ou = []
    for E in range(4, 16):
        dp, s = granule(E); lds = LA + (E & 3) * 12288
        ou.append(Unit(f"O{E}", lds, 12288, f"G{E}", f"G{E+1}" if E < 15 else None,
                       [D(None, lds + f * 1024, f"s{86+dp}", WS_O + s * 12288 + f * 1024, la, SRD_WS, "sc1") for f in range(12)], earliest=cfg.po_epoch[s]))
    code, _, rest = schedule(ou, BI["VB"], BI["G15"], lambda e: 24, list(occ), pre, fl)
    assert not rest
    ext(code); ext(fin())
    a(raw("; keep-alive", uses=[lane, t0, t1, t2] + ([vst] if cfg.stamps else [])))
    if "-v" in sys.argv:
        for u in units + wu + ou: print(f"{u.name:6s} issue after {BARS[u.issue] if u.issue>=0 else 'start':5s} need {BARS[u.need]}", file=sys.stderr)
    return c

def build(cfg):
    L = []; a = L.append
    a("; @launch grid=(256,1,1) block=(512,1,1) lds=163840")
    a('.amdgcn_target "amdgcn-amd-amdhsa--gfx950"'); a(".text"); a(f".globl {NAME}_kernel"); a(".p2align 8")
    a(f".type {NAME}_kernel,@function"); a(f"{NAME}_kernel:")
    if cfg.stamps: a("s_memrealtime s[96:97]")
    a("s_cmp_ge_u32 s2, 256"); a("s_cbranch_scc1 L_exit")
    a("s_bfe_u32 s3, s2, 0x10002")
    a("s_mul_i32 s4, s3, 40")
    a("s_add_u32 s14, s0, s4"); a("s_addc_u32 s15, s1, 0")
    a("s_load_dwordx8 s[16:23], s[14:15], 0"); a("s_load_dwordx2 s[24:25], s[14:15], 32")
    a("s_load_dwordx4 s[36:39], s[0:1], 80"); a("s_load_dwordx2 s[40:41], s[0:1], 96")
    a("v_lshrrev_b32 v1, 6, v0")
    a("s_and_b32 s4, s2, 3")
    a("v_readfirstlane_b32 s8, v1")
    a("s_lshr_b32 s5, s2, 5")
    a("s_bfe_u32 s6, s2, 0x20003")
    a("s_add_u32 s7, s5, s6"); a("s_and_b32 s7, s7, 3")
    a("s_getpc_b64 s[42:43]"); a("L_code_base:")
    a("s_cmp_lt_u32 s8, 4"); a("s_cbranch_scc1 L_compute")
    h, ph = finish(helper(cfg), 1, 256)
    for x in h: a(x.text())
    a("L_exit:"); a("s_endpgm")
    a(".p2align 6"); a("L_compute:")
    c, pc = finish(compute(cfg), 1, 256)
    for x in c: a(x.text())
    a("L_code_end:"); a("s_endpgm")
    a('.section .rodata,"a"'); a(".p2align 6"); a(f".amdhsa_kernel {NAME}_kernel")
    for x in ("next_free_vgpr 256", "next_free_sgpr 102", "accum_offset 256", "group_segment_fixed_size 0", "kernarg_size 104",
              "user_sgpr_count 2", "user_sgpr_kernarg_segment_ptr 1", "system_sgpr_workgroup_id_x 1"): a("  .amdhsa_" + x)
    a(".end_amdhsa_kernel")
    if "-v" in sys.argv:
        from collections import Counter
        print("peak regs helper", ph, "compute", pc, Counter(x.kind for x in c), file=sys.stderr)
        print("auto waits", sum(1 for x in c if x.note == "auto"), "hazard nops", [(x.kw["states"]) for x in c if x.note == "hazard"], file=sys.stderr)
    return "\n".join(L) + "\n"

if __name__ == "__main__":
    out = sys.argv[1]
    kw = {}
    for x in sys.argv[2:]:
        if "=" in x:
            k, v = x.split("=", 1); kw[k] = eval(v)
    open(out, "w").write(build(Cfg(**kw)))
```

```python
import sys, math
from backend import *

NAME = "concat_heads__mha_block_cached__gqa_block_cached__near_ridge"

class Cfg:
    fl_x = ""; fl_wq = ""; fl_k = "nt"; fl_v = "nt"; fl_wo = ""
    order_mode = "dir"
    quota = 7
    kpos = (6, 9, 12)
    rd_span = 16
    stamps = False
    poll_max = 4000
    st_epoch = ("O0", "G1", "G4", "G7")
    fl_epoch = ("G1", "G3", "G6", "G9")
    po_epoch = ("G2", "G5", "G8", "G11")
    prefetch_code = True
    diag = None
    def __init__(self, **kw):
        for k, v in kw.items():
            assert hasattr(self, k), k
            setattr(self, k, v)

LA, LB, LC = 0, 49152, 98304
WO_SLOT = [LC, LC + 20480, LC + 40960, LB, LB + 20480]
WS_O, WS_P, WS_FO, WS_FP, WS_ST = 0, 16 << 20, 32 << 20, 33 << 20, 40 << 20
S_BR, S_KQ, S_B, S_P, S_NS, S_W = "s3", "s4", "s5", "s6", "s7", "s8"
SRD_X, SRD_WQ, SRD_K, SRD_V, SRD_WO, SRD_OUT, SRD_DBG, SRD_WS = 44, 48, 52, 56, 60, 64, 68, 72
BARS = [f"Q{i}" for i in range(20)] + ["KB", "VB", "VH", "O0"] + [f"G{i}" for i in range(16)]
BI = {n: i for i, n in enumerate(BARS)}

def srd(base, ptr, size):
    return [salu(f"s_mov_b32 s{base}, s{ptr}"), salu(f"s_mov_b32 s{base+1}, s{ptr+1}"),
            salu(f"s_mov_b32 s{base+2}, {size:#x}"), salu(f"s_mov_b32 s{base+3}, 0x20000")]

def stamp(cfg, idx, vst):
    if not cfg.stamps: return []
    return [raw("s_memrealtime s[98:99]"), waitl(0), raw(f"v_writelane_b32 {{0}}, s98, {idx}", ops=[vst], defs=[vst], uses=[vst])]

def granule(E):
    if E < 4: return 0, E
    return 1 + (E - 4) % 3, (E - 4) // 3

def compute(cfg):
    c = []; a = c.append; ext = c.extend
    v0 = V(1, "tid", fixed=0)
    lane = V(1, "lane"); g = V(1, "g"); j16 = V(1, "j16"); r4 = V(1, "r"); c4 = V(1, "c")
    t0 = V(1); t1 = V(1); t2 = V(1)
    vst = V(1, "stamps")
    a(salu(f"s_lshr_b32 s9, {S_W}, 1"))
    a(salu(f"s_and_b32 s10, {S_W}, 1"))
    a(valu("v_and_b32", lane, 63, v0))
    a(valu("v_lshrrev_b32", g, 4, lane)); a(valu("v_and_b32", j16, 15, lane))
    a(valu("v_lshrrev_b32", r4, 2, j16)); a(valu("v_and_b32", c4, 3, lane))
    zero = V(1, "zero"); fa = V(1, "fa")
    a(waitl(0))
    if cfg.stamps: a(valu("v_mov_b32", vst, 0)); a(nop(1)); a(raw("v_writelane_b32 {0}, s96, 0", ops=[vst], defs=[vst], uses=[vst]))
    ext(srd(SRD_WS, 40, 0x10000000)); ext(srd(SRD_DBG, 38, 256)); ext(srd(SRD_OUT, 36, 768 * 1280 * 2))
    a(salu(f"s_lshl_b32 s11, {S_BR}, 3")); a(salu(f"s_add_u32 s11, s11, {S_B}"))
    a(salu(f"s_lshl_b32 s12, s11, 2")); a(salu(f"s_add_u32 s12, s12, {S_P}"))
    a(salu(f"s_lshl_b32 s13, s12, 8")); a(salu(f"s_lshl_b32 s14, {S_W}, 4")); a(salu("s_add_u32 s13, s13, s14"))
    a(salu(f"s_add_u32 s76, s13, {WS_FP:#x}"))
    a(salu(f"s_lshl_b32 s14, {S_KQ}, 2")); a(salu("s_add_u32 s77, s76, s14"))
    a(salu(f"s_lshl_b32 s13, {S_BR}, 2")); a(salu(f"s_add_u32 s13, s13, {S_KQ}")); a(salu("s_lshl_b32 s13, s13, 3")); a(salu(f"s_add_u32 s13, s13, {S_B}"))
    a(salu("s_lshl_b32 s13, s13, 8")); a(salu(f"s_lshl_b32 s14, {S_P}, 2")); a(salu("s_add_u32 s13, s13, s14"))
    a(salu(f"s_add_u32 s78, s13, {WS_FO:#x}"))
    a(salu(f"s_lshl_b32 s13, s11, 4")); a(salu(f"s_lshl_b32 s14, {S_KQ}, 2")); a(salu("s_add_u32 s13, s13, s14")); a(salu(f"s_add_u32 s79, s13, {S_P}"))
    a(valu("v_mov_b32", zero, 0))
    a(salu("s_mov_b64 exec, 1", sdefs=["exec"]))
    a(vstore("buffer_store_dword", zero, zero, SRD_WS, "s77", fl="sc0 sc1"))
    a(vstore("buffer_store_dword", zero, zero, SRD_WS, "s78", fl="sc0 sc1"))
    a(salu("s_mov_b64 exec, -1", sdefs=["exec"]))
    if cfg.prefetch_code:
        pf = V(1, "pf"); pa = V(1, "pa")
        a(salu("s_lshr_b32 s13, s2, 3")); a(salu("s_lshl_b32 s13, s13, 2")); a(salu(f"s_add_u32 s13, s13, {S_W}")); a(salu("s_lshl_b32 s13, s13, 9"))
        a(valu("v_lshlrev_b32", pa, 7, c4)); a(valu("v_add_u32", pa, "s13", pa))
        a(valu("v_min_u32", pa, "L_code_end-L_code_base-4", pa))
        a(salu("s_mov_b64 exec, 15", sdefs=["exec"]))
        a(I("vload", "global_load_dword {0}, {1}, s[42:43]", [pf, pa], defs=[pf], uses=[pa]))
        a(salu("s_mov_b64 exec, -1", sdefs=["exec"]))
    AW = [V(1, f"aw{t}") for t in range(8)]; AX = [V(1, f"ax{h}") for h in range(2)]
    AK = [V(1, f"ak{t}") for t in range(8)]; AV = [V(1, f"av{t}") for t in range(4)]
    AO = [V(1, f"ao{t}") for t in range(4)]; AOR = V(1, "aor"); AOW = V(1, "aow")
    a(valu("v_and_b32", t0, 1, g)); a(valu("v_lshl_or_b32", t0, t0, 2, r4))
    a(valu("v_lshl_add_u32", t1, g, 3, r4)); a(valu("v_lshlrev_b32", t1, 9, t1))
    a(valu("v_lshl_add_u32", t1, c4, 3, t1)); a(valu("v_lshl_add_u32", t1, t0, 5, t1))
    a(salu(f"s_lshl_b32 s13, s9, 8")); a(salu(f"s_add_u32 s13, s13, {LC}"))
    a(valu("v_add_u32", AW[0], "s13", t1))
    for t in range(1, 8): a(valu("v_xor_b32", AW[t], t << 5, AW[0]))
    a(valu("v_lshrrev_b32", t0, 1, j16)); a(valu("v_xor_b32", t0, t0, g)); a(valu("v_lshlrev_b32", t0, 4, t0))
    a(valu("v_lshl_add_u32", t0, j16, 7, t0))
    a(salu(f"s_mul_i32 s13, s10, {48*128}")); a(salu(f"s_add_u32 s13, s13, {LB}"))
    a(valu("v_add_u32", AX[0], "s13", t0)); a(valu("v_xor_b32", AX[1], 64, AX[0]))
    a(valu("v_lshrrev_b32", t0, 1, g)); a(valu("v_xor_b32", t0, t0, j16)); a(valu("v_lshlrev_b32", t0, 4, t0))
    a(valu("v_lshl_add_u32", t0, j16, 8, t0)); a(valu("v_and_b32", t1, 1, g)); a(valu("v_lshl_add_u32", t0, t1, 3, t0))
    a(salu(f"s_mul_i32 s13, s9, {96*256}")); a(salu(f"s_add_u32 s13, s13, {LA}"))
    a(valu("v_add_u32", AK[0], "s13", t0))
    for t in range(1, 8): a(valu("v_xor_b32", AK[t], t << 5, AK[0]))
    a(valu("v_lshl_add_u32", t2, g, 2, r4))
    a(valu("v_bfe_u32", t0, t2, 1, 2)); a(valu("v_lshlrev_b32", t0, 5, t0))
    a(valu("v_lshl_add_u32", t0, t2, 7, t0)); a(valu("v_lshl_add_u32", t0, c4, 3, t0))
    a(salu(f"s_mul_i32 s13, s9, 12288")); a(salu(f"s_add_u32 s13, s13, {LB}"))
    a(valu("v_add_u32", AV[0], "s13", t0))
    for t in range(1, 4): a(valu("v_xor_b32", AV[t], t << 5, AV[0]))
    a(valu("v_mul_u32_u24", t0, 320, t2)); a(valu("v_lshl_add_u32", t0, c4, 3, t0))
    a(salu("s_mul_i32 s13, s9, 5"))
    for par in range(2):
        a(valu("v_xor_b32", t2, "s13", t1)); a(valu("v_lshl_add_u32", t2, t2, 5, t0))
        a(valu("v_add_u32", AO[par], LC, t2)); a(valu("v_add_u32", AO[2 + par], LB, t2))
        a(salu("s_add_u32 s13, s13, 1"))
    a(salu("s_mul_i32 s13, s10, 3072")); a(valu("v_lshlrev_b32", t0, 4, lane)); a(valu("v_add_u32", AOR, "s13", t0))
    a(salu("s_mul_i32 s13, s9, 6144")); a(valu("v_add_u32", AOW, "s13", AOR))
    a(salu(f"s_mov_b32 s80, {f2u(128 ** -0.5 * math.log2(math.e)):#x}"))
    ones = V(4, "ones")

    def q_reads(t):
        A = [V(4, f"qa{t}_{i}") for i in range(8)]; B = [V(4, f"qb{t}_{j}") for j in range(3)]
        u = t // 2; rd = []
        xo = ((u + 2) & 3) * 12288; wo_ = (t & 3) * 16384
        for j in range(3): rd.append(dsr("ds_read_b128", B[j], AX[t & 1], xo + j * 2048))
        for i in range(8):
            for h in range(2): rd.append(dsr("ds_read_b64_tr_b16", A[i][2*h:2*h+2], AW[i], wo_ + h * 2048))
        return A, B, rd
    QA = [[V(4, f"q{i}_{j}") for j in range(3)] for i in range(8)]
    snake = lambda ni: [(i, (j if i % 2 == 0 else 2 - j)) for i in range(ni) for j in range(3)]
    def k_reads(s, kts):
        fr = {}; rd = []
        for kt in kts:
            f = V(4, f"k{s}_{kt}"); fr[kt] = f
            for u in range(2): rd.append(dsr("ds_read_b64", f[2*u:2*u+2], AK[2 * s + u], kt * 4096))
        return fr, rd
    def q_cvt(s):
        o = []
        for j in range(3):
            T0, T1 = QA[2*s][j], QA[2*s+1][j]
            o += [valu("v_cvt_pk_bf16_f32", T0[0], T0[0], T0[1]), valu("v_cvt_pk_bf16_f32", T0[1], T0[2], T0[3]),
                  valu("v_cvt_pk_bf16_f32", T0[2], T1[0], T1[1]), valu("v_cvt_pk_bf16_f32", T0[3], T1[2], T1[3])]
        return o
    ext(stamp(cfg, 1, vst))
    a(bar("Q0"))
    ext(stamp(cfg, 2, vst))
    A, B, rd = q_reads(0); ext(rd)
    KF = {}
    for t in range(20):
        a(waitl(0))
        a(bar(f"Q{t+1}" if t < 19 else "KB"))
        if cfg.stamps and t in (4, 9, 14, 19): ext(stamp(cfg, 3 + t // 5, vst))
        sp = [mfma(QA[i][j], A[i], B[j], 0 if t == 0 else None) for i, j in snake(8)]
        if t < 19:
            A, B, rd = q_reads(t + 1)
            extra = []
            if t == 2:
                extra = [waitv(0)]
            if t == 3:
                one = V(1, "one")
                extra = [valu("v_mov_b32", one, 1), salu(f"s_cmp_eq_u32 {S_W}, 0"), salu("s_cselect_b64 exec, 1, 0", sdefs=["exec"]),
                         raw("s_cbranch_execz L_nopub"),
                         vstore("buffer_store_byte", one, zero, SRD_DBG, "s79", fl="sc0 sc1"), raw("L_nopub:"), salu("s_mov_b64 exec, -1", sdefs=["exec"]), nop(3)]
            ext(merge(sp, interleave(sp, rd, 0, cfg.rd_span)))
            ext(extra)
        else:
            KF[0], rd = k_reads(0, range(6))
            s1 = interleave(sp, rd, 0, 12)
            s2 = interleave(sp, q_cvt(0), 10, 16); s3 = interleave(sp, q_cvt(1), 16, 24)
            ext(merge(sp, s1, s2, s3))
    SA = [[V(4, f"s{kt}_{j}") for j in range(3)] for kt in range(6)]
    M = [V(1, f"m{j}") for j in range(3)]
    def max_ops(kt):
        o = []
        for j in range(3):
            T = SA[kt][j]
            if kt == 0: o += [valu("v_max3_f32", M[j], T[0], T[1], T[2]), valu("v_max_f32", M[j], M[j], T[3])]
            else: o += [valu("v_max3_f32", M[j], M[j], T[0], T[1]), valu("v_max3_f32", M[j], M[j], T[2], T[3])]
        return [o[0], o[2], o[4], o[1], o[3], o[5]]
    for s in range(4):
        sp = [mfma(SA[kt][j], KF[s][kt], QA[2*s][j], 0 if s == 0 else None) for kt, j in snake(6)]
        sl = []
        if s < 3:
            KF[s + 1], rd = k_reads(s + 1, range(6)); sl.append(interleave(sp, rd, 0, 12))
        if s == 0: sl.append(interleave(sp, q_cvt(2), 0, 9)); sl.append(interleave(sp, q_cvt(3), 9, 18))
        if s == 1: sl.append(interleave(sp, [valu("v_mov_b32", ones[k], "0x3f803f80") for k in range(4)], 12, 16))
        if s == 3:
            for kt in range(4): sl.append(interleave(sp, max_ops(kt), 3 * kt + 6, 3 * kt + 9))
        a(waitl(0))
        ext(merge(sp, *sl))
    ext(stamp(cfg, 7, vst))
    ext(max_ops(4)); ext(max_ops(5))
    T = [V(1, f"mt{j}") for j in range(3)]
    for op in ("v_permlane32_swap_b32", "v_permlane16_swap_b32"):
        for j in range(3): a(valu("v_mov_b32", T[j], M[j]))
        for j in range(3): a(perm(op, M[j], T[j]))
        for j in range(3): a(valu("v_max_f32", M[j], M[j], T[j]))
    for j in range(3): a(valu("v_mul_f32", M[j], "s80", M[j]))
    def v_reads(s):
        fr = {}; rd = []
        for dt in (2*s, 2*s+1):
            for ks in range(3):
                f = V(4, f"v{dt}_{ks}"); fr[dt, ks] = f
                for u in range(2):
                    rd.append(dsr("ds_read_b64_tr_b16", f[2*u:2*u+2], AV[dt & 3], (dt >> 2) * 24576 + (32 * ks + 16 * u) * 128))
        return fr, rd
    sm = []
    for ks in range(3):
        for j in range(3):
            T0, T1 = SA[2*ks][j], SA[2*ks+1][j]
            regs = [T0[k] for k in range(4)] + [T1[k] for k in range(4)]
            for x in regs: sm.append(fma_neg(x, x, "s80", M[j]))
            for x in regs: sm.append(trans("v_exp_f32", x, x))
            sm += [valu("v_cvt_pk_bf16_f32", T0[0], T0[0], T0[1]), valu("v_cvt_pk_bf16_f32", T0[1], T0[2], T0[3]),
                   valu("v_cvt_pk_bf16_f32", T0[2], T1[0], T1[1]), valu("v_cvt_pk_bf16_f32", T0[3], T1[2], T1[3])]
    P = [[SA[2*ks][j] for j in range(3)] for ks in range(3)]
    SUM = [V(4, f"sum{j}") for j in range(3)]
    VF = {}
    n1 = 20
    for ks in range(3):
        for j in range(3):
            k = ks * 3 + j
            blk = sm[k * n1:(k + 1) * n1]
            if k == 7:
                a(bar("VB")); ext(stamp(cfg, 8, vst))
                VF[0], rd = v_reads(0)
                blk = merge(blk, interleave(blk, rd, 0, 12))
            if k >= 1:
                pk, pj = divmod(k - 1, 3)
                blk = blk[:3] + [mfma(SUM[pj], ones, P[pk][pj], 0 if pk == 0 else None)] + blk[3:]
            ext(blk)
    OA = [[V(4, f"o{dt}_{j}") for j in range(3)] for dt in range(8)]
    RI = [V(1, f"ri{j}") for j in range(3)]
    def norm(s):
        o = []
        for j in range(3):
            T0, T1 = OA[2*s][j], OA[2*s+1][j]
            for k in range(4): o.append(valu("v_mul_f32", T0[k], T0[k], RI[j]))
            o += [valu("v_cvt_pk_bf16_f32", T0[0], T0[0], T0[1]), valu("v_cvt_pk_bf16_f32", T0[1], T0[2], T0[3])]
        for j in range(3):
            T0, T1 = OA[2*s][j], OA[2*s+1][j]
            for k in range(4): o.append(valu("v_mul_f32", T1[k], T1[k], RI[j]))
            o += [valu("v_cvt_pk_bf16_f32", T0[2], T1[0], T1[1]), valu("v_cvt_pk_bf16_f32", T0[3], T1[2], T1[3])]
            o.append(dsw("ds_write_b128", AOW, T0, LA + s * 12288 + j * 1024))
        return o
    def o_reads(m):
        E, hh = divmod(m, 2)
        A = [V(4, f"wa{m}_{i}") for i in range(5)]; B = [V(4, f"wb{m}_{j}") for j in range(3)]
        rd = []
        for j in range(3): rd.append(dsr("ds_read_b128", B[j], AOR, LA + (E & 3) * 12288 + hh * 6144 + j * 1024))
        sl = WO_SLOT[E % 5]; reg = 0 if sl >= LC else 2; base = sl - (LC if sl >= LC else LB)
        for i in range(5):
            for u in range(2):
                rd.append(dsr("ds_read_b64_tr_b16", A[i][2*u:2*u+2], AO[reg + (i & 1)], base + hh * 10240 + u * 5120 + (i & ~1) * 32))
        return A, B, rd
    for s in range(4):
        sp = []
        for dt in (2*s, 2*s+1):
            for ks in range(3):
                for j in (range(3) if ks % 2 == 0 else reversed(range(3))):
                    sp.append(mfma(OA[dt][j], VF[s][dt, ks], P[ks][j], 0 if ks == 0 else None))
        sl = []
        a(waitl(0))
        if s == 0:
            sp = sp[:2] + [mfma(SUM[2], ones, P[2][2])] + sp[2:]
            sl.append(interleave(sp, [trans("v_rcp_f32", RI[j], SUM[j][0]) for j in range(3)], 12, 18))
        if s == 1: a(bar("VH"))
        if s == 2: a(bar("O0")); ext(stamp(cfg, 9, vst))
        if s == 3: a(bar("G0"))
        if s < 3:
            VF[s + 1], rd = v_reads(s + 1); sl.append(interleave(sp, rd, 0, 12))
        else:
            A, B, rd = o_reads(0); sl.append(interleave(sp, rd, 0, 13))
        if s >= 1: sl.append(interleave(sp, norm(s - 1), 0, 16))
        ext(merge(sp, *sl))
    PA = [[V(4, f"p{i}_{j}") for j in range(3)] for i in range(5)]
    n3 = norm(3)
    for m in range(32):
        a(waitl(0))
        if m % 2 == 1 and m < 31:
            a(bar(f"G{(m+1)//2}"))
            if cfg.stamps and (m + 1) // 2 in (1, 4, 5, 8, 12): ext(stamp(cfg, {1: 10, 4: 11, 5: 12, 8: 13, 12: 14}[(m + 1) // 2], vst))
        sp = [mfma(PA[i][j], A[i], B[j], 0 if m == 0 else None) for i, j in snake(5)]
        sl = []
        if m < 31:
            A, B, rd = o_reads(m + 1); sl.append(interleave(sp, rd, 0, 10))
        if m < 3: sl.append(interleave(sp, n3[m * 13:(m + 1) * 13], 2 if m == 0 else 0, 15 if m < 2 else 12))
        ext(merge(sp, *sl))
    ext(stamp(cfg, 15, vst))
    tiles = [PA[t // 3][t % 3] for t in range(15)]
    la16 = V(1, "la16"); oaddr = V(1, "oaddr"); lane2 = V(1); tt = V(1); one2 = V(1); z2 = V(1)
    a(valu("v_and_b32", lane2, 63, v0)); a(valu("v_lshlrev_b32", la16, 4, lane2))
    a(valu("v_and_b32", tt, 15, lane2)); a(valu("v_mul_u32_u24", oaddr, 2560, tt))
    a(valu("v_lshrrev_b32", tt, 4, lane2)); a(valu("v_lshl_add_u32", oaddr, tt, 3, oaddr))
    a(salu(f"s_mul_i32 s13, {S_B}, {96*2560}")); a(salu(f"s_mul_i32 s14, s10, {48*2560}")); a(salu("s_add_u32 s13, s13, s14"))
    a(salu(f"s_mul_i32 s14, {S_BR}, 1280")); a(salu("s_add_u32 s13, s13, s14"))
    a(salu(f"s_mul_i32 s14, {S_NS}, 320")); a(salu("s_add_u32 s13, s13, s14"))
    a(salu(f"s_mul_i32 s14, s9, 160")); a(salu("s_add_u32 s13, s13, s14"))
    a(valu("v_add_u32", oaddr, "s13", oaddr))
    a(salu(f"s_lshl_b32 s81, s12, 17")); a(salu(f"s_lshl_b32 s14, {S_W}, 11")); a(salu("s_add_u32 s81, s81, s14")); a(salu(f"s_add_u32 s81, s81, {WS_P:#x}"))
    a(valu("v_mov_b32", one2, 1)); a(valu("v_mov_b32", z2, 0))
    for q in range(1, 4):
        a(salu(f"s_cmp_eq_u32 {S_KQ}, {q}")); a(raw(f"s_cbranch_scc1 L_epi{q}"))
    live = tiles + [la16, oaddr, one2, z2] + ([vst] if cfg.stamps else [])
    RX = [[V(4, f"rx{k}_{h}") for h in range(2)] for k in range(3)]; FL = V(4, "fl"); U = V(2, "u")
    for q in range(4):
        a(raw(f"L_epi{q}:")); a(nop(7))
        for d in [(q + k) & 3 for k in (1, 2, 3)]:
            tl = tiles[4 * d:4 * d + 4]
            a(salu(f"s_add_u32 s13, s81, {d * 32768 + q * 8192}"))
            for h in range(2):
                T0 = tl[2 * h]
                a(valu("v_cvt_pk_bf16_f32", T0[0], T0[0], T0[1])); a(valu("v_cvt_pk_bf16_f32", T0[1], T0[2], T0[3]))
                if 2 * h + 1 < len(tl):
                    T1 = tl[2 * h + 1]
                    a(valu("v_cvt_pk_bf16_f32", T0[2], T1[0], T1[1])); a(valu("v_cvt_pk_bf16_f32", T0[3], T1[2], T1[3]))
                a(vstore("buffer_store_dwordx4", T0, la16, SRD_WS, "s13", h * 1024, "sc1"))
        a(waitv(0))
        ext(stamp(cfg, 16, vst))
        a(salu("s_mov_b64 exec, 1", sdefs=["exec"]))
        a(vstore("buffer_store_dword", one2, z2, SRD_WS, "s77", fl="sc0 sc1"))
        a(salu("s_mov_b32 s14, 0"))
        a(raw(f"L_pp{q}:"))
        a(vload("buffer_load_dwordx4", FL, z2, SRD_WS, "s76", fl="sc1")); a(waitv(0))
        o = [k for k in range(4) if k != q]
        a(valu("v_and_b32", FL[o[0]], FL[o[0]], FL[o[1]])); a(valu("v_and_b32", FL[o[0]], FL[o[0]], FL[o[2]]))
        a(I("valu", "v_readfirstlane_b32 s13, {0}", [FL[o[0]]], uses=[FL[o[0]]], sdefs=["s13"]))
        a(salu("s_add_u32 s14, s14, 1")); a(salu("s_cmp_eq_u32 s13, 1", suses=["s13"])); a(raw(f"s_cbranch_scc1 L_pg{q}"))
        a(salu(f"s_cmp_lt_u32 s14, {cfg.poll_max}")); a(raw(f"s_cbranch_scc1 L_pp{q}"))
        a(raw(f"L_pg{q}:"))
        a(salu("s_mov_b64 exec, -1", sdefs=["exec"]))
        ext(stamp(cfg, 17, vst))
        for k, sq in enumerate(o):
            a(salu(f"s_add_u32 s13, s81, {q * 32768 + sq * 8192}"))
            for h in range(2): a(vload("buffer_load_dwordx4", RX[k][h], la16, SRD_WS, "s13", h * 1024, "sc1"))
        own = tiles[4 * q:4 * q + 4]
        for k in range(3):
            for n_, Tn in enumerate(own):
                for e in range(2):
                    src = RX[k][n_ // 2][(n_ % 2) * 2 + e]
                    a(valu("v_lshlrev_b32", U[0], 16, src)); a(valu("v_and_b32", U[1], "0xffff0000", src))
                    a(valu("v_add_f32", Tn[2 * e], Tn[2 * e], U[0])); a(valu("v_add_f32", Tn[2 * e + 1], Tn[2 * e + 1], U[1]))
        for n_, Tn in enumerate(own):
            i, j = divmod(4 * q + n_, 3)
            a(valu("v_cvt_pk_bf16_f32", Tn[0], Tn[0], Tn[1])); a(valu("v_cvt_pk_bf16_f32", Tn[1], Tn[2], Tn[3]))
            a(salu(f"s_mov_b32 s13, {j * 16 * 2560}"))
            a(vstore("buffer_store_dwordx2", Tn[0:2], oaddr, SRD_OUT, "s13", i * 32))
        if cfg.stamps:
            a(waitv(0)); ext(stamp(cfg, 18, vst)); ext(stamp_out(vst, v0))
        if cfg.diag:
            idx, wg = cfg.diag[:2]; base = cfg.diag[2] if len(cfg.diag) > 2 else 6000
            if idx == -2: a(salu(f"s_cmp_lg_u32 s2, {wg}")); a(raw(f"s_cbranch_scc1 L_dx{q}"))
            a(salu("s_mov_b32 s13, s96"))
            if idx >= 0:
                a(nop(1)); a(raw(f"v_readlane_b32 s13, {{0}}, {idx}", ops=[vst], uses=[vst])); a(nop(3))
                if wg >= 0: a(salu(f"s_cmp_eq_u32 s2, {wg}")); a(salu("s_cselect_b32 s13, s13, s96"))
            a(salu(f"s_add_u32 s13, s13, {base}")); a(salu("s_mov_b32 s14, 0"))
            a(raw(f"L_dg{q}:")); a(raw("s_sleep 2")); a(raw("s_memrealtime s[98:99]")); a(waitl(0))
            a(salu("s_add_u32 s14, s14, 1")); a(salu("s_cmp_gt_u32 s14, 20000")); a(raw(f"s_cbranch_scc1 L_dx{q}"))
            a(salu("s_sub_u32 s15, s98, s13")); a(salu("s_cmp_lt_i32 s15, 0")); a(raw(f"s_cbranch_scc1 L_dg{q}"))
            a(raw(f"L_dx{q}:"))
        a(raw("s_endpgm"))
    a(raw("; keep-alive", uses=live + [x for k in RX for x in k] + [FL, U]))
    if cfg.prefetch_code: c.insert(next(i for i, x in enumerate(c) if x.kind == "bar" and x.kw["name"] == "Q3"), raw("; pf", uses=[pf]))
    return c

def stamp_out(vst, v0):
    t = V(1)
    return [salu("s_lshl_b32 s13, s2, 11"), salu(f"s_add_u32 s13, s13, {WS_ST:#x}"), valu("v_lshlrev_b32", t, 2, v0),
            vstore("buffer_store_dword", vst, t, SRD_WS, "s13"), waitv(0)]

def f2u(x):
    import struct
    return struct.unpack("<I", struct.pack("<f", x))[0]

class Unit:
    def __init__(self, name, lds, size, need, free, ins, earliest=None):
        self.name = name; self.lds = lds; self.size = size; self.need = BI[need]
        self.free = BI[free] if free else len(BARS); self.ins = ins
        self.earliest = BI[earliest] if earliest else -1

def order_tables(cfg):
    if cfg.order_mode == "same": return [list(range(10))] * 4
    if cfg.order_mode == "dir": return [list(range(10)), list(range(9, -1, -1))] * 2
    if cfg.order_mode == "rot": return [[(u + o) % 10 for u in range(10)] for o in (0, 5, 2, 7)]
    if cfg.order_mode.startswith("lead"):
        d = int(cfg.order_mode[4:] or 1); out = []
        for r in range(4):
            key = lambda u: (u - d - 0.5) if (u % 4 == r) else u
            out.append(sorted(range(10), key=key))
        return out
    raise ValueError

def schedule(units, first_bar, last_bar, quota, occupied, pre=None, inflight=None):
    code = []; q = [(u, k) for u in units for k in range(len(u.ins))]; pos = 0
    fl = list(inflight or [])
    for e in range(first_bar - 1, last_bar + 1):
        if e >= first_bar: code.append(bar(BARS[e]))
        for x in (pre or {}).get(e, []):
            code.append(x)
            if x.kind in ("vload", "vstore", "dma"): fl.append(None)
            if x.kind == "wait" and "vm" in x.kw: fl = fl[max(0, len(fl) - x.kw["vm"]):] if x.kw["vm"] else []
        n = 0; qt = quota(e)
        while pos < len(q):
            u, k = q[pos]
            must = any(uu.need <= e + 1 for uu, _ in q[pos:])
            if n >= qt and not must: break
            ok = e >= u.earliest and all(o is u or o.lds + o.size <= u.lds or u.lds + u.size <= o.lds or o.free <= e for o in occupied)
            if not ok:
                assert not must, f"unit {u.name} cannot be placed in epoch {e}"
                break
            if k == 0: occupied.append(u); u.issue = e
            code.extend(u.ins[k]); fl.append(u); pos += 1; n += 1
        if e < last_bar:
            idx = max((k for k, u in enumerate(fl) if u is not None and u.need <= e + 1), default=-1)
            if idx >= 0:
                nn = len(fl) - 1 - idx
                code.append(waitv(nn)); fl = fl[len(fl) - min(nn, 63):] if nn else []
    return code, fl, q[pos:]

def helper(cfg):
    c = []; a = c.append; ext = c.extend
    v0 = V(1, "tid", fixed=0)
    lane = V(1); t0 = V(1); t1 = V(1); t2 = V(1)
    vWQ = V(1, "vwq"); vX = V(1, "vx"); vK = V(1, "vk"); vV = V(1, "vv")
    vst = V(1, "stamps")
    a(salu(f"s_sub_u32 s9, {S_W}, 4"))
    a(valu("v_and_b32", lane, 63, v0))
    tb = [sum(u << (4 * k) for k, u in enumerate(t)) for t in order_tables(cfg)]
    a(salu(f"s_mov_b32 s82, {tb[0] & 0xffffffff:#x}")); a(salu(f"s_mov_b32 s83, {tb[0] >> 32:#x}"))
    for r in range(1, 4):
        if tb[r] != tb[0]:
            a(salu(f"s_cmp_eq_u32 {S_NS}, {r}")); a(salu(f"s_cmov_b32 s82, {tb[r] & 0xffffffff:#x}")); a(salu(f"s_cmov_b32 s83, {tb[r] >> 32:#x}"))
    a(salu("s_lshl_b32 s10, s9, 10"))
    a(salu("s_lshr_b32 s11, s9, 1")); a(salu("s_lshl_b32 s11, s11, 1")); a(salu("s_add_u32 s11, s11, s9"))
    a(salu(f"s_lshl_b32 s12, {S_KQ}, 3")); a(salu(f"s_lshl_b32 s13, {S_P}, 1")); a(salu("s_add_u32 s12, s12, s13"))
    a(valu("v_lshrrev_b32", t0, 4, lane)); a(salu("s_lshl_b32 s13, s9, 2")); a(valu("v_add_u32", t0, "s13", t0))
    a(valu("v_xor_b32", t1, t0, lane)); a(valu("v_and_b32", t1, 7, t1)); a(valu("v_lshlrev_b32", t1, 4, t1))
    a(valu("v_lshrrev_b32", t2, 3, lane)); a(valu("v_mul_u32_u24", vX, 1280, t2)); a(valu("v_add_u32", vX, vX, t1))
    a(salu(f"s_mul_i32 s13, {S_B}, 122880")); a(salu(f"s_mul_i32 s14, s9, {8*1280}")); a(salu("s_add_u32 s13, s13, s14"))
    a(valu("v_add_u32", vX, "s13", vX))
    a(valu("v_lshrrev_b32", t1, 5, lane)); a(salu("s_lshl_b32 s13, s9, 1")); a(valu("v_add_u32", vWQ, "s13", t1))
    a(valu("v_lshlrev_b32", vWQ, 1, vWQ)); a(valu("v_xor_b32", vWQ, vWQ, lane)); a(valu("v_and_b32", vWQ, 31, vWQ)); a(valu("v_lshlrev_b32", vWQ, 4, vWQ))
    a(valu("v_lshl_add_u32", vWQ, t1, 13, vWQ))
    a(salu("s_lshl_b32 s13, s11, 14")); a(salu("s_lshl_b32 s14, s12, 8")); a(salu("s_add_u32 s13, s13, s14"))
    a(valu("v_add_u32", vWQ, "s13", vWQ))
    a(salu("s_lshl_b32 s11, s11, 10"))
    a(waitl(0))
    if cfg.stamps: a(valu("v_mov_b32", vst, 0)); a(nop(1)); a(raw("v_writelane_b32 {0}, s96, 0", ops=[vst], defs=[vst], uses=[vst]))
    ext(srd(SRD_X, 16, 8 * 122880)); ext(srd(SRD_WQ, 22, 640 * 8192))
    late = []; b = late.append
    late += srd(SRD_K, 18, 8 * 786432) + srd(SRD_V, 20, 8 * 786432) + srd(SRD_WO, 24, 4096 * 1280) + srd(SRD_WS, 40, 0x10000000) + srd(SRD_DBG, 38, 256)
    b(salu(f"s_lshl_b32 s13, {S_B}, 5")); b(salu("s_add_u32 s13, s13, s12")); b(salu("s_mul_i32 s13, s13, 24576"))
    b(valu("v_xor_b32", t1, t0, lane)); b(valu("v_and_b32", t1, 15, t1)); b(valu("v_lshlrev_b32", t1, 4, t1))
    b(valu("v_lshl_add_u32", vK, t0, 8, t1)); b(valu("v_add_u32", vK, "s13", vK))
    b(valu("v_lshrrev_b32", t1, 3, lane)); b(valu("v_and_b32", t1, 6, t1)); b(valu("v_xor_b32", t1, t1, lane)); b(valu("v_and_b32", t1, 7, t1)); b(valu("v_lshlrev_b32", t1, 4, t1))
    b(valu("v_lshl_add_u32", vV, t2, 8, t1)); b(salu("s_lshl_b32 s14, s9, 11")); b(salu("s_add_u32 s13, s13, s14")); b(valu("v_add_u32", vV, "s13", vV))

    def D(m0base, m0imm, sbase, simm, vaddr, sr, fl):
        so = salu(f"s_add_u32 s15, {sbase}, {simm:#x}") if sbase else salu(f"s_mov_b32 s15, {simm:#x}")
        m = salu(f"s_add_u32 m0, {m0base}, {m0imm:#x}") if m0base else salu(f"s_mov_b32 m0, {m0imm:#x}")
        return [m, so, dma(vaddr, sr, "s15", fl)]
    units = []
    kch = 0; nk = len(cfg.kpos); kper = 12 // nk
    def kunit(cn):
        return Unit(f"K{cn}", LA + cn * kper * 4096, kper * 4096, "KB", "VB", [D("s10", LA + m * 4096, None, m * 4096, vK, SRD_K, cfg.fl_k) for m in range(cn * kper, (cn + 1) * kper)])
    def vunit(sl):
        half, hh = divmod(sl, 2)
        return Unit(f"V{sl}", LB + sl * 12288, 12288, "VH" if half else "VB", "G0",
                    [D("s10", LB + sl * 12288 + m * 4096, None, hh * 24576 + half * 128 + m * 8192, vV, SRD_V, cfg.fl_v) for m in range(3)])
    nm = lambda t: f"Q{t}" if t < 20 else "KB"
    for t in range(20):
        u = t // 2
        if t % 2 == 0:
            lds = LB + ((u + 2) & 3) * 12288
            ins = [D("s10", lds + m * 4096, "s84", m * 32 * 1280, vX, SRD_X, cfg.fl_x) for m in range(3)]
            src = "s82" if u < 8 else "s83"
            ins[0] = [salu(f"s_bfe_u32 s85, {src}, {(4 << 16) | (4 * (u & 7)):#x}"), salu("s_lshl_b32 s84, s85, 7"), salu("s_lshl_b32 s85, s85, 19")] + ins[0]
            units.append(Unit(f"X{u}", lds, 12288, nm(t), nm(t + 2), ins))
        lds = LC + (t & 3) * 16384
        units.append(Unit(f"W{t}", lds, 16384, nm(t), nm(t + 1),
                          [D("s11", lds + jj * 1024, "s85", ((t & 1) * 32 + 2 * jj) * 8192, vWQ, SRD_WQ, cfg.fl_wq) for jj in (0, 2, 8, 10)]))
        while kch < nk and cfg.kpos[kch] == t: units.append(kunit(kch)); kch += 1
    assert kch == nk
    units += [vunit(s) for s in range(4)]
    occ = []
    def quota(e):
        if e == -1: return 11
        if e >= BI["Q19"]: return 99
        return cfg.quota
    pre = {0: late}
    if cfg.stamps:
        pre[BI["Q10"]] = stamp(cfg, 4, vst); pre[BI["KB"]] = stamp(cfg, 6, vst)
    code, fl, rest = schedule(units, 0, BI["KB"], quota, occ, pre)
    assert not rest, [u.name for u, k in rest]
    ext(code)
    for s in range(4):
        u = Unit(f"Oown{s}", LA + s * 12288, 12288, "G0", f"G{max(s+1, 3 if s == 3 else 0)}", []); occ.append(u)
    a(salu("s_cmp_eq_u32 s9, 2")); a(raw("s_cbranch_scc1 L_storer"))
    a(salu("s_cmp_eq_u32 s9, 3")); a(raw("s_cbranch_scc1 L_poller"))
    fin = lambda: (stamp(cfg, 18, vst) + stamp_out(vst, v0) if cfg.stamps else []) + [raw("s_endpgm")]
    vWO = [V(1, f"vwo{j}") for j in range(5)]
    a(salu(f"s_lshl_b32 s13, {S_KQ}, 3")); a(salu("s_add_u32 s13, s13, s9")); a(salu(f"s_mul_i32 s13, s13, {128*1280}"))
    a(salu(f"s_mul_i32 s14, {S_NS}, 320")); a(salu("s_add_u32 s13, s13, s14"))
    for j in range(5):
        a(valu("v_add_u32", t0, 64 * j, lane)); a(valu("v_mul_u32_u24", t1, 3277, t0)); a(valu("v_lshrrev_b32", t1, 16, t1))
        a(valu("v_mul_u32_u24", t2, 20, t1)); a(valu("v_sub_u32", t0, t0, t2))
        a(valu("v_lshrrev_b32", t2, 1, t1)); a(valu("v_and_b32", t2, 2, t2)); a(valu("v_xor_b32", t0, t0, t2))
        a(valu("v_mul_u32_u24", t1, 1280, t1)); a(valu("v_lshl_add_u32", t0, t0, 4, t1)); a(valu("v_add_u32", vWO[j], "s13", t0))
    for dp in range(4):
        a(salu(f"s_add_u32 s13, {S_P}, {dp}")); a(salu("s_and_b32 s13, s13, 3")); a(salu(f"s_mul_i32 s{86+dp}, s13, {256*1280}"))
    a(salu("s_mul_i32 s10, s9, 10240"))
    wu = []
    for E in range(16):
        dp, s = granule(E); lds = WO_SLOT[E % 5]
        wu.append(Unit(f"WO{E}", lds, 20480, f"G{E}", f"G{E+1}" if E < 15 else None,
                       [D("s10", lds + u * 5120 + j * 1024, f"s{86+dp}", (32 * s + 16 * u) * 1280, vWO[j], SRD_WO, cfg.fl_wo) for u in range(2) for j in range(5)]))
    code, _, rest = schedule(wu, BI["VB"], BI["G15"], lambda e: 30 if e < BI["G0"] else 12, list(occ), None, fl)
    assert not rest
    ext(code); ext(fin())
    a(raw("L_storer:"))
    la16 = V(1, "la16"); z = V(1, "z"); fv = V(1, "fv")
    OF = [[V(4, f"of{s}_{f}") for f in range(12)] for s in range(4)]
    def ogrp():
        return [salu(f"s_lshl_b32 s13, {S_BR}, 2"), salu(f"s_add_u32 s13, s13, {S_KQ}"), salu("s_lshl_b32 s13, s13, 3"), salu(f"s_add_u32 s13, s13, {S_B}")]
    a(valu("v_lshlrev_b32", la16, 4, lane)); a(valu("v_mov_b32", z, 0))
    ext(ogrp())
    a(salu("s_lshl_b32 s14, s13, 2")); a(salu(f"s_add_u32 s14, s14, {S_P}")); a(salu("s_mul_i32 s86, s14, 49152"))
    a(salu("s_lshl_b32 s13, s13, 8")); a(salu(f"s_lshl_b32 s14, {S_P}, 2")); a(salu("s_add_u32 s13, s13, s14")); a(salu(f"s_add_u32 s87, s13, {WS_FO:#x}"))
    rdy = ["O0", "G0", "G1", "G2"]
    assert all(BI[cfg.st_epoch[s]] <= BI[cfg.fl_epoch[s]] <= BI[cfg.po_epoch[s]] for s in range(4))
    pre = {}; seq = []
    for e in range(BI["VB"], BI["G15"] + 1):
        l = []
        for s in range(4):
            if BI[rdy[s]] == e: l += [dsr("ds_read_b128", OF[s][f], la16, LA + s * 12288 + f * 1024) for f in range(12)]
        for s in range(4):
            if BI[cfg.st_epoch[s]] == e:
                assert e >= BI[rdy[s]]
                for f in range(12):
                    if f % 4 == 0: l.append(salu(f"s_add_u32 s15, s86, {WS_O + s * 12288 + f * 1024:#x}"))
                    l.append(vstore("buffer_store_dwordx4", OF[s][f], la16, SRD_WS, "s15", (f % 4) * 1024, "sc1")); seq.append(s)
        for s in range(4):
            if BI[cfg.fl_epoch[s]] == e:
                idx = max(k for k, x in enumerate(seq) if x == s)
                l.append(waitv(len(seq) - 1 - idx))
                l += stamp(cfg, 8 + s, vst)
                l += [valu("v_mov_b32", fv, s + 1), salu("s_mov_b64 exec, 1", sdefs=["exec"]),
                      vstore("buffer_store_dword", fv, z, SRD_WS, "s87", fl="sc0 sc1"), salu("s_mov_b64 exec, -1", sdefs=["exec"])]
                seq.append(-1)
        l.append(waitl(0))
        pre[e] = l
    last = max(BI[x] for x in cfg.fl_epoch)
    code, _, _ = schedule([], BI["VB"], last, lambda e: 0, [], pre, fl)
    ext(code); ext(fin())
    a(raw("L_poller:"))
    la = V(1, "la"); z3 = V(1, "z3"); FL = V(4, "fl")
    a(valu("v_lshlrev_b32", la, 4, lane)); a(valu("v_mov_b32", z3, 0))
    ext(ogrp())
    for dp in range(1, 4):
        a(salu(f"s_add_u32 s14, {S_P}, {dp}")); a(salu("s_and_b32 s14, s14, 3")); a(salu("s_lshl_b32 s15, s13, 2")); a(salu("s_add_u32 s14, s14, s15"))
        a(salu(f"s_mul_i32 s{86+dp}, s14, 49152"))
    a(salu("s_lshl_b32 s13, s13, 8")); a(salu(f"s_add_u32 s86, s13, {WS_FO:#x}"))
    a(salu(f"s_lshl_b32 s13, {S_BR}, 3")); a(salu(f"s_add_u32 s13, s13, {S_B}")); a(salu("s_lshl_b32 s90, s13, 4"))
    def poll(lbl, sr, so, red, cmp):
        return [salu("s_mov_b64 exec, 1", sdefs=["exec"]), salu("s_mov_b32 s14, 0"), raw(f"{lbl}a:"),
                vload("buffer_load_dwordx4", FL, z3, sr, so, fl="sc1"), waitv(0),
                valu(red, FL[0], FL[0], FL[1]), valu(red, FL[2], FL[2], FL[3]), valu(red, FL[0], FL[0], FL[2]),
                I("valu", "v_readfirstlane_b32 s13, {0}", [FL[0]], uses=[FL[0]], sdefs=["s13"]),
                salu("s_add_u32 s14, s14, 1"), salu(cmp, suses=["s13"]), raw(f"s_cbranch_scc1 {lbl}b"),
                salu(f"s_cmp_lt_u32 s14, {cfg.poll_max}"), raw(f"s_cbranch_scc1 {lbl}a"), raw(f"{lbl}b:"), salu("s_mov_b64 exec, -1", sdefs=["exec"])]
    pre = {BI["VH"]: poll("L_hs", SRD_DBG, "s90", "v_and_b32", "s_cmp_eq_u32 s13, 0x01010101")}
    for s in range(4):
        pre.setdefault(BI[cfg.po_epoch[s]], []).extend(poll(f"L_po{s}", SRD_WS, "s86", "v_min_u32", f"s_cmp_ge_u32 s13, {s+1}") + stamp(cfg, 8 + s, vst))
    ou = []
    for E in range(4, 16):
        dp, s = granule(E); lds = LA + (E & 3) * 12288
        ou.append(Unit(f"O{E}", lds, 12288, f"G{E}", f"G{E+1}" if E < 15 else None,
                       [D(None, lds + f * 1024, f"s{86+dp}", WS_O + s * 12288 + f * 1024, la, SRD_WS, "sc1") for f in range(12)], earliest=cfg.po_epoch[s]))
    code, _, rest = schedule(ou, BI["VB"], BI["G15"], lambda e: 24, list(occ), pre, fl)
    assert not rest
    ext(code); ext(fin())
    a(raw("; keep-alive", uses=[lane, t0, t1, t2] + ([vst] if cfg.stamps else [])))
    if "-v" in sys.argv:
        for u in units + wu + ou: print(f"{u.name:6s} issue after {BARS[u.issue] if u.issue>=0 else 'start':5s} need {BARS[u.need]}", file=sys.stderr)
    return c

def build(cfg):
    L = []; a = L.append
    a("; @launch grid=(256,1,1) block=(512,1,1) lds=163840")
    a('.amdgcn_target "amdgcn-amd-amdhsa--gfx950"'); a(".text"); a(f".globl {NAME}_kernel"); a(".p2align 8")
    a(f".type {NAME}_kernel,@function"); a(f"{NAME}_kernel:")
    if cfg.stamps: a("s_memrealtime s[96:97]")
    a("s_cmp_ge_u32 s2, 256"); a("s_cbranch_scc1 L_exit")
    a("s_bfe_u32 s3, s2, 0x10002")
    a("s_mul_i32 s4, s3, 40")
    a("s_add_u32 s14, s0, s4"); a("s_addc_u32 s15, s1, 0")
    a("s_load_dwordx8 s[16:23], s[14:15], 0"); a("s_load_dwordx2 s[24:25], s[14:15], 32")
    a("s_load_dwordx4 s[36:39], s[0:1], 80"); a("s_load_dwordx2 s[40:41], s[0:1], 96")
    a("v_lshrrev_b32 v1, 6, v0")
    a("s_and_b32 s4, s2, 3")
    a("v_readfirstlane_b32 s8, v1")
    a("s_lshr_b32 s5, s2, 5")
    a("s_bfe_u32 s6, s2, 0x20003")
    a("s_add_u32 s7, s5, s6"); a("s_and_b32 s7, s7, 3")
    a("s_getpc_b64 s[42:43]"); a("L_code_base:")
    a("s_cmp_lt_u32 s8, 4"); a("s_cbranch_scc1 L_compute")
    h, ph = finish(helper(cfg), 1, 256)
    for x in h: a(x.text())
    a("L_exit:"); a("s_endpgm")
    a(".p2align 6"); a("L_compute:")
    c, pc = finish(compute(cfg), 1, 256)
    for x in c: a(x.text())
    a("L_code_end:"); a("s_endpgm")
    a('.section .rodata,"a"'); a(".p2align 6"); a(f".amdhsa_kernel {NAME}_kernel")
    for x in ("next_free_vgpr 256", "next_free_sgpr 102", "accum_offset 256", "group_segment_fixed_size 0", "kernarg_size 104",
              "user_sgpr_count 2", "user_sgpr_kernarg_segment_ptr 1", "system_sgpr_workgroup_id_x 1"): a("  .amdhsa_" + x)
    a(".end_amdhsa_kernel")
    if "-v" in sys.argv:
        from collections import Counter
        print("peak regs helper", ph, "compute", pc, Counter(x.kind for x in c), file=sys.stderr)
        print("auto waits", sum(1 for x in c if x.note == "auto"), "hazard nops", [(x.kw["states"]) for x in c if x.note == "hazard"], file=sys.stderr)
    return "\n".join(L) + "\n"

if __name__ == "__main__":
    out = sys.argv[1]
    kw = {}
    for x in sys.argv[2:]:
        if "=" in x:
            k, v = x.split("=", 1); kw[k] = eval(v)
    open(out, "w").write(build(Cfg(**kw)))
```
